```python
import torch

def _softmax(x, axis=-1):
    return torch.softmax(x, dim=axis)
def _gelu(x):
    return torch.nn.functional.gelu(x, approximate="tanh")
def _silu(x):
    return torch.nn.functional.silu(x)
def _sigmoid(x):
    return torch.sigmoid(x)
def _layernorm(x, axis=-1, eps=1e-5):
    m = x.mean(dim=axis, keepdim=True)
    v = x.var(dim=axis, keepdim=True, unbiased=False)
    return (x - m) / torch.sqrt(v + eps)
def _scatter_add(tgt, idx, src, axis=0):
    return tgt.clone().index_add_(axis, idx, src)
def _segment_sum(src, seg, n):
    out = torch.zeros((n,) + src.shape[1:], dtype=src.dtype)
    return out.index_add_(0, seg, src)
def _pad(x, pw):
    flat = tuple(v for pair in reversed(pw) for v in pair)
    return torch.nn.functional.pad(x, flat)

kernel_name = 'gated_mix__gqa_block_cached__glu_gated_geglu__decode'

def setup_inputs():

    _w = (lambda a: (lambda t: t.to(torch.bfloat16) if t.is_floating_point() else t)(torch.as_tensor(a)))
    def _A_setup():
        B, Sq, D = 2, 1, 576
        Hq, Hkv, Sk, Dh = 32, 16, 32768, 128
        assert Hq % Hkv == 0, (Hq, Hkv)
        return {
            "x": _w((lambda *s: torch.randn(*s, dtype=torch.bfloat16) * 0.05)(B, Sq, D)),
            "k_cache": _w((lambda *s: torch.randn(*s, dtype=torch.bfloat16) * 6.4)(B, Hkv, Sk, Dh)),
            "v_cache": _w((lambda *s: torch.randn(*s, dtype=torch.bfloat16) * 0.05)(B, Hkv, Sk, Dh)),
            "wq": _w((lambda *s: torch.randn(*s, dtype=torch.bfloat16) * 6.4)(D, Hq * Dh) * (D ** -0.5)),
            "wo": _w((lambda *s: torch.randn(*s, dtype=torch.bfloat16) * 0.05)(Hq * Dh, D) * ((Hq * Dh) ** -0.5)),
        }
    _A_in = _A_setup()

    def _B_setup():
        B, S, Dm, Df = 2, 1, 576, 4608
        return {
            "x": _w((lambda *s: torch.randn(*s, dtype=torch.bfloat16) * 0.05)(B, S, Dm)),
            "w_gate": _w((lambda *s: torch.randn(*s, dtype=torch.bfloat16) * 0.4)(Dm, Df) * (Dm ** -0.5)),
            "w_up": _w((lambda *s: torch.randn(*s, dtype=torch.bfloat16) * 0.4)(Dm, Df) * (Dm ** -0.5)),
            "w_down": _w((lambda *s: torch.randn(*s, dtype=torch.bfloat16) * 0.4)(Df, Dm) * (Df ** -0.5)),
        }
    _B_in = _B_setup()

    return {
        "A_x": _A_in["x"],
        "A_k_cache": _A_in["k_cache"],
        "A_v_cache": _A_in["v_cache"],
        "A_wq": _A_in["wq"],
        "A_wo": _A_in["wo"],
        "B_x": _B_in["x"],
        "B_w_gate": _B_in["w_gate"],
        "B_w_up": _B_in["w_up"],
        "B_w_down": _B_in["w_down"],
        "gate_w": _w((lambda *s: torch.randn(*s, dtype=torch.bfloat16) * 0.05)(576) * 16.0),
    }

def reference(A_x, A_k_cache, A_v_cache, A_wq, A_wo, B_x, B_w_gate, B_w_up, B_w_down, gate_w):
    def _A_ref(x, k_cache, v_cache, wq, wo):
        B, Sq, D = x.shape
        Hq, Dh = 32, 128
        Hkv = k_cache.shape[1]
        rep = Hq // Hkv
        q = (lambda x, *d: x.permute(*d))((x @ wq).reshape(B, Sq, Hq, Dh), 0, 2, 1, 3)
        k = (lambda x, n, axis: torch.repeat_interleave(x, n, dim=axis))(k_cache, rep, axis=1)
        v = (lambda x, n, axis: torch.repeat_interleave(x, n, dim=axis))(v_cache, rep, axis=1)
        scores = torch.einsum("bhqd,bhkd->bhqk", q, k) * (Dh ** -0.5)
        p = _softmax(scores, axis=-1)
        o = torch.einsum("bhqk,bhkd->bhqd", p, v)
        return (lambda x, *d: x.permute(*d))(o, 0, 2, 1, 3).reshape(B, Sq, Hq * Dh) @ wo

    def _B_ref(x, w_gate, w_up, w_down):
        g = torch.einsum("bsd,df->bsf", x, w_gate)
        u = torch.einsum("bsd,df->bsf", x, w_up)
        h = _gelu(g) * u
        return torch.einsum("bsf,fd->bsd", h, w_down)

    x = A_x
    g = _sigmoid((x * gate_w).sum(-1, keepdims=True))
    a = _A_ref(x, A_k_cache, A_v_cache, A_wq, A_wo)
    b = _B_ref(x, B_w_gate, B_w_up, B_w_down)
    return g * a + (1 - g) * b
```

```python
import sys, math, struct

PFX = "gmix"

def f2u(x):
    return struct.unpack("<I", struct.pack("<f", x))[0]

class A:
    def __init__(self):
        self.l = []
    def __call__(self, s):
        self.l.append("    " + s)
    def lab(self, s):
        self.l.append(s + ":")
    def c(self, s):
        self.l.append("    ; " + s)
    def text(self):
        return "\n".join(self.l) + "\n"

WS_Q = 0x0
WS_H = 0x8000
WS_G = 0x10000
WS_ACC = 0x20000
WS_ML = 0x40000
WS_O = 0x80000
WS_SIZE = 0x100000

KARG = dict(x=0, k=8, v=16, wq=24, wo=32, bx=40, wg=48, wu=56, wd=64, gw=72, out=80, dbg=88, ws=96)

SCALE = math.log2(math.e) / math.sqrt(128.0)

def srd(a, sd, sbase, nbytes):
    a(f"s_mov_b32 s{sd}, s{sbase}")
    a(f"s_and_b32 s{sd+1}, s{sbase+1}, 0xffff")
    a(f"s_mov_b32 s{sd+2}, {nbytes}")
    a(f"s_mov_b32 s{sd+3}, 0x00020000")

def lane_masks(a, vl8, vm):
    a(f"v_lshrrev_b32 v{vm+3}, 1, v{vl8}")
    a(f"v_and_b32 v{vm+2}, 1, v{vl8}")
    a(f"v_mov_b32 v{vm+1}, 0xffff")
    a(f"v_mov_b32 v{vm}, 0xffff0000")
    a(f"v_cmp_eq_u32 vcc, 1, v{vm+2}")
    a("s_nop 1")
    a(f"v_cndmask_b32 v{vm+2}, v{vm+1}, v{vm}, vcc")
    tmp_half = vm + 2
    a(f"v_mov_b32 v{vm}, v{vm+3}")
    a(f"v_mov_b32 v{vm+1}, v{tmp_half}")
    a(f"v_cmp_eq_u32 vcc, 3, v{vm}")
    a("s_nop 1")
    a(f"v_cndmask_b32 v{vm+3}, 0, v{vm+1}, vcc")
    a(f"v_cmp_eq_u32 vcc, 2, v{vm}")
    a("s_nop 1")
    a(f"v_cndmask_b32 v{vm+2}, 0, v{vm+1}, vcc")
    a(f"v_cmp_eq_u32 vcc, 1, v{vm}")
    a(f"v_mov_b32 v{vm+4}, v{vm+1}")
    a("s_nop 0")
    a(f"v_cndmask_b32 v{vm+1}, 0, v{vm+4}, vcc")
    a(f"v_cmp_eq_u32 vcc, 0, v{vm}")
    a("s_nop 1")
    a(f"v_cndmask_b32 v{vm}, 0, v{vm+4}, vcc")

def gen_k2(name, NW=8, T=2, nt=True):
    a = A()
    NWG = 256
    KEYS_PER_WAVE = 32768 * 32 // (NWG * NW)
    STEP = 16 * T
    NSTEP = KEYS_PER_WAVE // STEP
    ntm = " nt" if nt else ""
    sK, sV, sW = 4, 8, 12
    sOff, sOff2, sCnt, sWv, sC, sT0, sT1 = 16, 17, 18, 19, 20, 21, 22
    vLane = 1
    vKoff, vVoff = 2, 3
    vMask = 4
    vM, vL, vAlpha, vMC, vTa, vTb = 9, 10, 11, 12, 13, 14
    vO = 16
    vQ = 20
    vS = 36
    vP = vS + 4 * T
    vB = vP + 4 * T
    vB = (vB + 1) // 2 * 2
    vKb = vB + 8
    vVb = vKb + 2 * 16 * T
    nv = vVb + 2 * 16 * T
    a.c("attention partials: each wave streams %d keys" % KEYS_PER_WAVE)
    a(f"s_cmp_ge_u32 s2, {NWG}")
    a(f"s_cbranch_scc1 {name}_end")
    a(f"s_load_dwordx4 s[24:27], s[0:1], {KARG['k']}")
    a(f"s_load_dwordx2 s[28:29], s[0:1], {KARG['ws']}")
    a(f"v_and_b32 v{vLane}, 63, v0")
    a(f"v_lshrrev_b32 v{vTa}, 6, v0")
    a("s_nop 0")
    a(f"v_readfirstlane_b32 s{sWv}, v{vTa}")
    a("s_waitcnt lgkmcnt(0)")
    srd(a, sK, 24, 268435456)
    srd(a, sV, 26, 268435456)
    srd(a, sW, 28, WS_SIZE)
    a(f"s_lshr_b32 s{sT0}, s2, 3")
    a(f"s_and_b32 s{sT1}, s2, 7")
    a(f"s_mul_i32 s{sT1}, s{sT1}, {NW}")
    a(f"s_add_u32 s{sT1}, s{sT1}, s{sWv}")
    a(f"s_mul_i32 s{sT1}, s{sT1}, {KEYS_PER_WAVE * 256}")
    a(f"s_lshl_b32 s{sOff}, s{sT0}, 23")
    a(f"s_add_u32 s{sOff}, s{sOff}, s{sT1}")
    a(f"s_mov_b32 s{sC}, {f2u(SCALE):#x}")
    a(f"v_and_b32 v{vTa}, 15, v{vLane}")
    a(f"v_lshrrev_b32 v{vTb}, 4, v{vLane}")
    a(f"v_lshlrev_b32 v{vKoff}, 8, v{vTa}")
    a(f"v_lshl_add_u32 v{vKoff}, v{vTb}, 4, v{vKoff}")
    a(f"v_lshlrev_b32 v{vVoff}, 10, v{vTb}")
    a(f"v_lshl_add_u32 v{vVoff}, v{vTa}, 4, v{vVoff}")
    a(f"v_lshrrev_b32 v{vM}, 3, v{vTa}")
    a(f"s_lshl_b32 s{sT0}, s{sT0}, 1")
    a(f"v_add_u32 v{vM}, s{sT0}, v{vM}")
    a(f"v_lshlrev_b32 v{vM}, 8, v{vM}")
    a(f"v_lshl_add_u32 v{vM}, v{vTb}, 4, v{vM}")
    for i in range(4):
        a(f"buffer_load_dwordx4 v[{vQ+4*i}:{vQ+4*i+3}], v{vM}, s[{sW}:{sW+3}], 0 offen offset:{WS_Q + i*64}")
    a(f"v_and_b32 v{vTa}, 7, v{vLane}")
    lane_masks(a, vTa, vMask)
    a(f"v_mov_b32 v{vM}, 0xff800000")
    a(f"v_mov_b32 v{vL}, 0")
    for r in range(4):
        a(f"v_mov_b32 v{vO+r}, 0")

    def issue(buf):
        a(f"s_add_u32 s{sOff2}, s{sOff}, 0")
        for t in range(T):
            so = sOff if t == 0 else sOff2
            if t > 0:
                a(f"s_add_u32 s{sOff2}, s{sOff}, {4096*t}")
            for i in range(4):
                r0 = vKb + buf * 16 * T + t * 16 + i * 4
                a(f"buffer_load_dwordx4 v[{r0}:{r0+3}], v{vKoff}, s[{sK}:{sK+3}], s{so} offen offset:{i*64}{ntm}")
        for t in range(T):
            so = sOff if t == 0 else sOff2
            if t > 0:
                a(f"s_add_u32 s{sOff2}, s{sOff}, {4096*t}")
            for r in range(4):
                r0 = vVb + buf * 16 * T + t * 16 + r * 4
                a(f"buffer_load_dwordx4 v[{r0}:{r0+3}], v{vVoff}, s[{sV}:{sV+3}], s{so} offen offset:{r*256}{ntm}")
        a(f"s_add_u32 s{sOff}, s{sOff}, {4096*T}")

    def compute(buf, last):
        NL = 4 * T
        a(f"s_waitcnt vmcnt({NL if last else 3*NL})")
        for t in range(T):
            for i in range(4):
                r0 = vKb + buf * 16 * T + t * 16 + i * 4
                src = "0" if i == 0 else f"v[{vS+4*t}:{vS+4*t+3}]"
                a(f"v_mfma_f32_16x16x32_bf16 v[{vS+4*t}:{vS+4*t+3}], v[{r0}:{r0+3}], v[{vQ+4*i}:{vQ+4*i+3}], {src}")
        a("s_nop 7")
        regs = [vS + i for i in range(4 * T)]
        a(f"v_max3_f32 v{vTa}, v{regs[0]}, v{regs[1]}, v{regs[2]}")
        rest = regs[3:]
        while rest:
            if len(rest) >= 2:
                a(f"v_max3_f32 v{vTa}, v{vTa}, v{rest[0]}, v{rest[1]}")
                rest = rest[2:]
            else:
                a(f"v_max_f32 v{vTa}, v{vTa}, v{rest[0]}")
                rest = rest[1:]
        a(f"v_mov_b32 v{vTb}, v{vTa}")
        a("s_nop 1")
        a(f"v_permlane32_swap_b32 v{vTa}, v{vTb}")
        a(f"v_max_f32 v{vTa}, v{vTa}, v{vTb}")
        a(f"v_mov_b32 v{vTb}, v{vTa}")
        a("s_nop 1")
        a(f"v_permlane16_swap_b32 v{vTa}, v{vTb}")
        a(f"v_max_f32 v{vTa}, v{vTa}, v{vTb}")
        a(f"v_max_f32 v{vTb}, v{vM}, v{vTa}")
        a(f"v_sub_f32 v{vTa}, v{vM}, v{vTb}")
        a(f"v_mul_f32 v{vTa}, s{sC}, v{vTa}")
        a(f"v_exp_f32 v{vAlpha}, v{vTa}")
        a(f"v_mul_f32 v{vMC}, s{sC}, v{vTb}")
        a(f"v_mov_b32 v{vM}, v{vTb}")
        for i in range(4 * T):
            a(f"v_fma_f32 v{vP+i}, v{vS+i}, s{sC}, -v{vMC}")
        for i in range(4 * T):
            a(f"v_exp_f32 v{vP+i}, v{vP+i}")
        for r in range(4):
            a(f"v_mul_f32 v{vO+r}, v{vO+r}, v{vAlpha}")
        a(f"v_fma_f32 v{vL}, v{vL}, v{vAlpha}, v{vP}")
        for i in range(1, 4 * T):
            a(f"v_add_f32 v{vL}, v{vL}, v{vP+i}")
        a(f"s_waitcnt vmcnt({0 if last else 2*NL})")
        for t in range(T):
            for r in range(4):
                k = t * 4 + r
                b0 = vB + (k % 2) * 4
                a(f"v_cvt_pk_bf16_f32 v{vTa}, v{vP+k}, v{vP+k}")
                for j in range(4):
                    a(f"v_and_b32 v{b0+j}, v{vTa}, v{vMask+j}")
                a("s_nop 1")
                r0 = vVb + buf * 16 * T + t * 16 + r * 4
                a(f"v_mfma_f32_16x16x32_bf16 v[{vO}:{vO+3}], v[{r0}:{r0+3}], v[{b0}:{b0+3}], v[{vO}:{vO+3}]")

    issue(0)
    a("s_waitcnt vmcnt(%d)" % (8 * T))
    a(f"s_mov_b32 s{sCnt}, {NSTEP // 2 - 1}")
    a.lab(f"{name}_loop")
    issue(1)
    compute(0, False)
    issue(0)
    compute(1, False)
    a(f"s_sub_u32 s{sCnt}, s{sCnt}, 1")
    a(f"s_cmp_lg_u32 s{sCnt}, 0")
    a(f"s_cbranch_scc1 {name}_loop")
    issue(1)
    compute(0, False)
    compute(1, True)
    a("s_nop 7")
    a(f"v_mov_b32 v{vTb}, v{vL}")
    a("s_nop 1")
    a(f"v_permlane32_swap_b32 v{vL}, v{vTb}")
    a(f"v_add_f32 v{vL}, v{vL}, v{vTb}")
    a(f"v_mov_b32 v{vTb}, v{vL}")
    a("s_nop 1")
    a(f"v_permlane16_swap_b32 v{vL}, v{vTb}")
    a(f"v_add_f32 v{vL}, v{vL}, v{vTb}")
    a(f"s_lshl_b32 s{sT0}, s{sWv}, 10")
    a(f"v_lshl_add_u32 v{vTa}, v{vLane}, 4, s{sT0}")
    a(f"ds_write_b128 v{vTa}, v[{vO}:{vO+3}]")
    a(f"v_and_b32 v{vTb}, 8, v{vLane}")
    a(f"s_lshl_b32 s{sT0}, s{sWv}, 4")
    a(f"s_add_u32 s{sT0}, s{sT0}, {NW*1024}")
    a(f"v_add_u32 v{vTb}, s{sT0}, v{vTb}")
    a(f"v_mov_b32 v{vS}, v{vM}")
    a(f"v_mov_b32 v{vS+1}, v{vL}")
    a(f"ds_write_b64 v{vTb}, v[{vS}:{vS+1}]")
    a("s_waitcnt lgkmcnt(0)")
    a("s_barrier")
    a(f"s_cmp_lg_u32 s{sWv}, 0")
    a(f"s_cbranch_scc1 {name}_end")
    vm = vKb
    vo = vVb
    assert NW * 4 <= 2 * 16 * T and NW * 2 <= 2 * 16 * T
    a(f"v_and_b32 v{vTb}, 8, v{vLane}")
    for w in range(NW):
        a(f"ds_read_b64 v[{vm+2*w}:{vm+2*w+1}], v{vTb} offset:{NW*1024 + w*16}")
    a(f"v_lshlrev_b32 v{vTa}, 4, v{vLane}")
    for w in range(NW):
        a(f"ds_read_b128 v[{vo+4*w}:{vo+4*w+3}], v{vTa} offset:{w*1024}")
    a("s_waitcnt lgkmcnt(0)")
    a(f"v_mov_b32 v{vM}, v{vm}")
    for w in range(1, NW):
        a(f"v_max_f32 v{vM}, v{vM}, v{vm+2*w}")
    a(f"v_mov_b32 v{vL}, 0")
    for r in range(4):
        a(f"v_mov_b32 v{vO+r}, 0")
    for w in range(NW):
        a(f"v_sub_f32 v{vTa}, v{vm+2*w}, v{vM}")
        a(f"v_mul_f32 v{vTa}, s{sC}, v{vTa}")
        a(f"v_exp_f32 v{vTa}, v{vTa}")
        a("s_nop 0")
        a(f"v_fma_f32 v{vL}, v{vTa}, v{vm+2*w+1}, v{vL}")
        for r in range(4):
            a(f"v_fma_f32 v{vO+r}, v{vTa}, v{vo+4*w+r}, v{vO+r}")
    a(f"s_lshl_b32 s{sT0}, s2, 10")
    a(f"v_lshl_add_u32 v{vTa}, v{vLane}, 4, s{sT0}")
    a(f"v_add_u32 v{vTa}, {WS_O:#x}, v{vTa}")
    a(f"buffer_store_dwordx4 v[{vO}:{vO+3}], v{vTa}, s[{sW}:{sW+3}], 0 offen")
    a(f"v_and_b32 v{vTb}, 8, v{vLane}")
    a(f"s_lshl_b32 s{sT0}, s2, 4")
    a(f"s_add_u32 s{sT0}, s{sT0}, {WS_ML:#x}")
    a(f"v_add_u32 v{vTb}, s{sT0}, v{vTb}")
    a(f"v_mov_b32 v{vS}, v{vM}")
    a(f"v_mov_b32 v{vS+1}, v{vL}")
    a(f"buffer_store_dwordx2 v[{vS}:{vS+1}], v{vTb}, s[{sW}:{sW+3}], 0 offen")
    a("s_waitcnt vmcnt(0)")
    a.lab(f"{name}_end")
    a("s_endpgm")
    return a.text(), nv, 32, (NWG, 64 * NW), NW * 1024 + NW * 16

def gen_k1(name):
    a = A()
    NW = 8
    ROWS = 576 // NW
    NM = ROWS // 4
    sW, sX, sA, sB = 4, 8, 12, 16
    sWv, sT0, sT1, sOffA, sCb, sRole = 20, 21, 22, 23, 30, 31
    vLane, vTa, vTb, vAoff, vXoff = 1, 2, 3, 4, 5
    vMask = 6
    vD0, vD1 = 12, 16
    vBop = 20
    vX = 28
    vA0 = 46
    vA1 = vA0 + 4 * NM
    nv = vA1 + 4 * NM
    a(f"s_cmp_ge_u32 s2, 69")
    a(f"s_cbranch_scc1 {name}_end")
    a(f"s_load_dwordx2 s[24:25], s[0:1], {KARG['x']}")
    a(f"s_load_dwordx2 s[26:27], s[0:1], {KARG['ws']}")
    a(f"v_and_b32 v{vLane}, 63, v0")
    a(f"v_lshrrev_b32 v{vTa}, 6, v0")
    a("s_nop 0")
    a(f"v_readfirstlane_b32 s{sWv}, v{vTa}")
    a("s_waitcnt lgkmcnt(0)")
    srd(a, sW, 26, WS_SIZE)
    srd(a, sX, 24, 2304)
    a(f"s_cmp_eq_u32 s2, 68")
    a(f"s_cbranch_scc1 {name}_misc")
    a(f"s_cmp_lt_u32 s2, 32")
    a(f"s_cbranch_scc1 {name}_qp")
    a(f"s_load_dwordx4 s[24:27], s[0:1], {KARG['wg']}")
    a(f"s_sub_u32 s{sCb}, s2, 32")
    a(f"s_mov_b32 s{sRole}, 1")
    a("s_waitcnt lgkmcnt(0)")
    srd(a, sA, 24, 576 * 9216)
    srd(a, sB, 26, 576 * 9216)
    a(f"s_mov_b32 s{sT1}, 9216")
    a(f"s_branch {name}_gemv")
    a.lab(f"{name}_qp")
    a(f"s_load_dwordx2 s[24:25], s[0:1], {KARG['wq']}")
    a(f"s_mov_b32 s{sCb}, s2")
    a(f"s_mov_b32 s{sRole}, 0")
    a("s_waitcnt lgkmcnt(0)")
    srd(a, sA, 24, 576 * 8192)
    srd(a, sB, 24, 576 * 8192)
    a(f"s_mov_b32 s{sT1}, 8192")
    a.lab(f"{name}_gemv")
    a(f"v_and_b32 v{vTa}, 15, v{vLane}")
    a(f"v_lshrrev_b32 v{vTb}, 4, v{vLane}")
    a(f"v_mul_lo_u32 v{vAoff}, v{vTb}, s{sT1}")
    a(f"v_lshl_add_u32 v{vAoff}, v{vTa}, 4, v{vAoff}")
    a(f"v_lshrrev_b32 v{vXoff}, 3, v{vTa}")
    a(f"v_mul_u32_u24 v{vXoff}, 1152, v{vXoff}")
    a(f"v_lshl_add_u32 v{vXoff}, v{vTb}, 1, v{vXoff}")
    a(f"s_mul_i32 s{sT0}, s{sWv}, {ROWS*2}")
    a(f"v_add_u32 v{vXoff}, s{sT0}, v{vXoff}")
    for m in range(NM):
        a(f"buffer_load_ushort v{vX+m}, v{vXoff}, s[{sX}:{sX+3}], 0 offen offset:{8*m}")
    a(f"s_mul_i32 s{sOffA}, s{sWv}, {ROWS}")
    a(f"s_mul_i32 s{sOffA}, s{sOffA}, s{sT1}")
    a(f"s_lshl_b32 s{sT0}, s{sCb}, 8")
    a(f"s_add_u32 s{sOffA}, s{sOffA}, s{sT0}")
    a(f"s_lshl_b32 s{sT1}, s{sT1}, 2")
    for m in range(NM):
        a(f"buffer_load_dwordx4 v[{vA0+4*m}:{vA0+4*m+3}], v{vAoff}, s[{sA}:{sA+3}], s{sOffA} offen")
        a(f"buffer_load_dwordx4 v[{vA1+4*m}:{vA1+4*m+3}], v{vAoff}, s[{sB}:{sB+3}], s{sOffA} offen")
        if m != NM - 1:
            a(f"s_add_u32 s{sOffA}, s{sOffA}, s{sT1}")
    a(f"v_and_b32 v{vTa}, 7, v{vLane}")
    lane_masks(a, vTa, vMask)
    a("s_waitcnt vmcnt(0)")
    for m in range(NM):
        b0 = vBop + (m % 2) * 4
        a(f"v_lshl_or_b32 v{vTa}, v{vX+m}, 16, v{vX+m}")
        for j in range(4):
            a(f"v_and_b32 v{b0+j}, v{vTa}, v{vMask+j}")
        a("s_nop 1")
        c0 = "0" if m == 0 else f"v[{vD0}:{vD0+3}]"
        c1 = "0" if m == 0 else f"v[{vD1}:{vD1+3}]"
        a(f"v_mfma_f32_16x16x32_bf16 v[{vD0}:{vD0+3}], v[{vA0+4*m}:{vA0+4*m+3}], v[{b0}:{b0+3}], {c0}")
        a(f"v_mfma_f32_16x16x32_bf16 v[{vD1}:{vD1+3}], v[{vA1+4*m}:{vA1+4*m+3}], v[{b0}:{b0+3}], {c1}")
    a("s_nop 7")
    a(f"s_lshl_b32 s{sT0}, s{sWv}, 11")
    a(f"v_lshl_add_u32 v{vTa}, v{vLane}, 4, s{sT0}")
    a(f"ds_write_b128 v{vTa}, v[{vD0}:{vD0+3}]")
    a(f"ds_write_b128 v{vTa}, v[{vD1}:{vD1+3}] offset:1024")
    a("s_waitcnt lgkmcnt(0)")
    a("s_barrier")
    a(f"s_cmp_lg_u32 s{sWv}, 0")
    a(f"s_cbranch_scc1 {name}_end")
    a(f"v_lshlrev_b32 v{vTa}, 4, v{vLane}")
    for w in range(NW):
        a(f"ds_read_b128 v[{vA0+4*w}:{vA0+4*w+3}], v{vTa} offset:{w*2048}")
        a(f"ds_read_b128 v[{vA1+4*w}:{vA1+4*w+3}], v{vTa} offset:{w*2048+1024}")
    a("s_waitcnt lgkmcnt(0)")
    for r in range(4):
        a(f"v_mov_b32 v{vD0+r}, v{vA0+r}")
        a(f"v_mov_b32 v{vD1+r}, v{vA1+r}")
    for w in range(1, NW):
        for r in range(4):
            a(f"v_add_f32 v{vD0+r}, v{vD0+r}, v{vA0+4*w+r}")
            a(f"v_add_f32 v{vD1+r}, v{vD1+r}, v{vA1+4*w+r}")
    a(f"v_lshrrev_b32 v{vTa}, 4, v{vLane}")
    a(f"v_lshlrev_b32 v{vTa}, 5, v{vTa}")
    a(f"v_and_b32 v{vTb}, 7, v{vLane}")
    a(f"v_add_u32 v{vTa}, v{vTa}, v{vTb}")
    a(f"s_lshl_b32 s{sT0}, s{sCb}, 7")
    a(f"v_add_u32 v{vTa}, s{sT0}, v{vTa}")
    a(f"v_bfe_u32 v{vTb}, v{vLane}, 3, 1")
    a(f"s_cmp_eq_u32 s{sRole}, 1")
    a(f"s_cbranch_scc1 {name}_ffn_out")
    a(f"v_lshl_add_u32 v{vTa}, v{vTb}, 12, v{vTa}")
    a(f"v_lshlrev_b32 v{vTa}, 1, v{vTa}")
    for r in range(4):
        a(f"v_cvt_pk_bf16_f32 v{vX+r}, v{vD0+r}, v{vD0+r}")
    for r in range(4):
        a(f"buffer_store_short v{vX+r}, v{vTa}, s[{sW}:{sW+3}], 0 offen offset:{WS_Q + r*16}")
    a(f"s_branch {name}_done")
    a.lab(f"{name}_ffn_out")
    a(f"v_mul_u32_u24 v{vTb}, 4608, v{vTb}")
    a(f"v_add_u32 v{vTa}, v{vTa}, v{vTb}")
    a(f"v_lshlrev_b32 v{vTa}, 1, v{vTa}")
    K1c = -2.0 * math.sqrt(2.0 / math.pi) * math.log2(math.e)
    a(f"s_mov_b32 s{sT0}, {f2u(0.044715):#x}")
    a(f"s_mov_b32 s{sT1}, {f2u(K1c):#x}")
    for r in range(4):
        g, u, t = vD0 + r, vD1 + r, vX + 8 + r
        a(f"v_cvt_pk_bf16_f32 v{g}, v{g}, v{g}")
        a(f"v_and_b32 v{g}, 0xffff0000, v{g}")
        a(f"v_cvt_pk_bf16_f32 v{u}, v{u}, v{u}")
        a(f"v_and_b32 v{u}, 0xffff0000, v{u}")
        a(f"v_mul_f32 v{t}, v{g}, v{g}")
        a(f"v_mul_f32 v{t}, v{t}, v{g}")
        a(f"v_fma_f32 v{t}, v{t}, s{sT0}, v{g}")
        a(f"v_mul_f32 v{t}, s{sT1}, v{t}")
        a(f"v_exp_f32 v{t}, v{t}")
        a("s_nop 0")
        a(f"v_add_f32 v{t}, 1.0, v{t}")
        a(f"v_rcp_f32 v{t}, v{t}")
        a("s_nop 0")
        a(f"v_mul_f32 v{t}, v{t}, v{g}")
        a(f"v_cvt_pk_bf16_f32 v{t}, v{t}, v{t}")
        a(f"v_and_b32 v{t}, 0xffff0000, v{t}")
        a(f"v_mul_f32 v{t}, v{t}, v{u}")
        a(f"v_cvt_pk_bf16_f32 v{vX+r}, v{t}, v{t}")
    for r in range(4):
        a(f"v_add_u32 v{vX+4+r}, {WS_H + r*16:#x}, v{vTa}")
        a(f"buffer_store_short v{vX+r}, v{vX+4+r}, s[{sW}:{sW+3}], 0 offen")
    a(f"s_branch {name}_done")
    a.lab(f"{name}_misc")
    a(f"v_lshlrev_b32 v{vTa}, 4, v0")
    a(f"v_add_u32 v{vTa}, {WS_ACC:#x}, v{vTa}")
    for r in range(4):
        a(f"v_mov_b32 v{vD0+r}, 0")
    for i in range(5):
        a(f"buffer_store_dwordx4 v[{vD0}:{vD0+3}], v{vTa}, s[{sW}:{sW+3}], 0 offen")
        a(f"v_add_u32 v{vTa}, 8192, v{vTa}")
    a(f"s_cmp_lg_u32 s{sWv}, 0")
    a(f"s_cbranch_scc1 {name}_done")
    a(f"s_load_dwordx2 s[24:25], s[0:1], {KARG['gw']}")
    a("s_waitcnt lgkmcnt(0)")
    srd(a, sA, 24, 1152)
    a(f"v_mul_u32_u24 v{vTa}, 18, v{vLane}")
    for i in range(9):
        a(f"buffer_load_ushort v{vX+i}, v{vTa}, s[{sA}:{sA+3}], 0 offen offset:{2*i}")
        a(f"buffer_load_ushort v{vA0+i}, v{vTa}, s[{sX}:{sX+3}], 0 offen offset:{2*i}")
        a(f"buffer_load_ushort v{vA0+16+i}, v{vTa}, s[{sX}:{sX+3}], 0 offen offset:{1152+2*i}")
    a("s_waitcnt vmcnt(0)")
    a(f"v_mov_b32 v{vD0}, 0")
    a(f"v_mov_b32 v{vD0+1}, 0")
    for i in range(9):
        a(f"v_lshlrev_b32 v{vX+i}, 16, v{vX+i}")
        a(f"v_lshlrev_b32 v{vA0+i}, 16, v{vA0+i}")
        a(f"v_lshlrev_b32 v{vA0+16+i}, 16, v{vA0+16+i}")
        a(f"v_fma_f32 v{vD0}, v{vX+i}, v{vA0+i}, v{vD0}")
        a(f"v_fma_f32 v{vD0+1}, v{vX+i}, v{vA0+16+i}, v{vD0+1}")
    for sh in (32, 16, 8, 4, 2, 1):
        a(f"v_xor_b32 v{vTa}, {sh}, v{vLane}")
        a(f"v_lshlrev_b32 v{vTa}, 2, v{vTa}")
        a(f"ds_bpermute_b32 v{vTb}, v{vTa}, v{vD0}")
        a(f"ds_bpermute_b32 v{vX}, v{vTa}, v{vD0+1}")
        a("s_waitcnt lgkmcnt(0)")
        a(f"v_add_f32 v{vD0}, v{vD0}, v{vTb}")
        a(f"v_add_f32 v{vD0+1}, v{vD0+1}, v{vX}")
    a(f"s_mov_b32 s{sT0}, {f2u(-math.log2(math.e)):#x}")
    for r in range(2):
        a(f"v_mul_f32 v{vD0+r}, s{sT0}, v{vD0+r}")
        a(f"v_exp_f32 v{vD0+r}, v{vD0+r}")
        a("s_nop 0")
        a(f"v_add_f32 v{vD0+r}, 1.0, v{vD0+r}")
        a(f"v_rcp_f32 v{vD0+r}, v{vD0+r}")
    a(f"v_mov_b32 v{vTa}, {WS_G:#x}")
    a(f"buffer_store_dwordx2 v[{vD0}:{vD0+1}], v{vTa}, s[{sW}:{sW+3}], 0 offen")
    a.lab(f"{name}_done")
    a("s_waitcnt vmcnt(0)")
    a.lab(f"{name}_end")
    a("s_endpgm")
    return a.text(), nv, 32, (69, 64 * NW), NW * 2048

def gen_k3(name):
    a = A()
    NWG = 256
    sW, sWo, sWd, sOut, sDbg = 4, 8, 12, 16, 20
    sWv, sT0, sT1, sT2, sC = 24, 25, 26, 27, 28
    vLane, vTa, vTb, vTc, vAoff = 1, 2, 3, 4, 5
    vMask = 6
    vDa, vDb = 12, 16
    vBop = 20
    vML = 28
    vOv = 44
    vH = 76
    vAo = 82
    vAd = 98
    vW = 118
    vG = 126
    vOff = 128
    nv = 136
    a(f"s_cmp_ge_u32 s2, {NWG}")
    a(f"s_cbranch_scc1 {name}_end")
    a(f"s_load_dwordx2 s[30:31], s[0:1], {KARG['ws']}")
    a(f"s_load_dwordx2 s[32:33], s[0:1], {KARG['wo']}")
    a(f"s_load_dwordx2 s[34:35], s[0:1], {KARG['wd']}")
    a(f"s_load_dwordx4 s[36:39], s[0:1], {KARG['out']}")
    a(f"v_and_b32 v{vLane}, 63, v0")
    a(f"v_lshrrev_b32 v{vTa}, 6, v0")
    a("s_nop 0")
    a(f"v_readfirstlane_b32 s{sWv}, v{vTa}")
    a("s_waitcnt lgkmcnt(0)")
    srd(a, sW, 30, WS_SIZE)
    srd(a, sWo, 32, 4096 * 1152)
    srd(a, sWd, 34, 4608 * 1152)
    srd(a, sOut, 36, 2304)
    srd(a, sDbg, 38, 256)
    a(f"s_mov_b32 s{sC}, {f2u(SCALE):#x}")
    a(f"v_and_b32 v{vTa}, 15, v{vLane}")
    a(f"v_lshrrev_b32 v{vTb}, 4, v{vLane}")
    a(f"v_mul_u32_u24 v{vAoff}, 1152, v{vTb}")
    a(f"v_lshl_add_u32 v{vAoff}, v{vTa}, 4, v{vAoff}")
    a(f"s_mul_i32 s{sT0}, s2, {16*1152}")
    a(f"s_lshl_b32 s{sT1}, s{sWv}, 8")
    a(f"s_add_u32 s{sT0}, s{sT0}, s{sT1}")
    for m in range(4):
        a(f"buffer_load_dwordx4 v[{vAo+4*m}:{vAo+4*m+3}], v{vAoff}, s[{sWo}:{sWo+3}], s{sT0} offen")
        a(f"s_add_u32 s{sT0}, s{sT0}, {4*1152}")
    a(f"s_mul_i32 s{sT0}, s2, {18*1152}")
    a(f"s_add_u32 s{sT0}, s{sT0}, s{sT1}")
    for m in range(5):
        a(f"buffer_load_dwordx4 v[{vAd+4*m}:{vAd+4*m+3}], v{vAoff}, s[{sWd}:{sWd+3}], s{sT0} offen")
        a(f"s_add_u32 s{sT0}, s{sT0}, {4*1152}")
    a(f"v_lshrrev_b32 v{vTc}, 3, v{vTa}")
    a(f"v_mul_u32_u24 v{vOff}, 4608, v{vTc}")
    a(f"v_add_u32 v{vOff}, v{vOff}, v{vTb}")
    a(f"s_mul_i32 s{sT0}, s2, 18")
    a(f"v_add_u32 v{vOff}, s{sT0}, v{vOff}")
    a(f"v_lshlrev_b32 v{vOff}, 1, v{vOff}")
    a(f"s_mov_b32 s{sT2}, {WS_H:#x}")
    for m in range(5):
        a(f"buffer_load_ushort v{vH+m}, v{vOff}, s[{sW}:{sW+3}], s{sT2} offen offset:{8*m}")
    a(f"v_lshlrev_b32 v{vOff}, 2, v{vTc}")
    a(f"s_mov_b32 s{sT2}, {WS_G:#x}")
    a(f"buffer_load_dword v{vG}, v{vOff}, s[{sW}:{sW+3}], s{sT2} offen")
    a(f"s_lshr_b32 s{sT0}, s2, 3")
    a(f"s_and_b32 s{sT1}, s{sT0}, 1")
    a(f"s_lshr_b32 s{sT0}, s{sT0}, 1")
    a(f"v_lshlrev_b32 v{vOff}, 4, v{vTc}")
    a(f"v_add_u32 v{vOff}, s{sT0}, v{vOff}")
    a(f"v_lshlrev_b32 v{vOff+1}, 7, v{vOff}")
    a(f"s_lshl_b32 s{sT2}, s{sT1}, 3")
    a(f"s_add_u32 s{sT2}, s{sT2}, {WS_ML:#x}")
    for s in range(8):
        a(f"buffer_load_dwordx2 v[{vML+2*s}:{vML+2*s+1}], v{vOff+1}, s[{sW}:{sW+3}], s{sT2} offen offset:{16*s}")
    a(f"v_lshlrev_b32 v{vOff+1}, 13, v{vOff}")
    a(f"s_and_b32 s{sT2}, s2, 7")
    for m in range(4):
        a(f"v_add_u32 v{vTa}, {4*m}, v{vTb}")
        a(f"v_and_b32 v{vTc}, 7, v{vTa}")
        a(f"v_lshlrev_b32 v{vTc}, 4, v{vTc}")
        a(f"v_lshrrev_b32 v{vTa}, 3, v{vTa}")
        a(f"s_lshl_b32 s{sT0}, s{sT2}, 1")
        a(f"v_add_u32 v{vTa}, s{sT0}, v{vTa}")
        a(f"v_and_b32 v{vOff+2}, 3, v{vTa}")
        a(f"v_lshl_add_u32 v{vTc}, v{vOff+2}, 2, v{vTc}")
        a(f"v_lshrrev_b32 v{vTa}, 2, v{vTa}")
        a(f"v_lshl_add_u32 v{vTc}, v{vTa}, 8, v{vTc}")
        a(f"s_lshl_b32 s{sT0}, s{sT1}, 7")
        a(f"v_add_u32 v{vTc}, s{sT0}, v{vTc}")
        a(f"v_add_u32 v{vTc}, v{vTc}, v{vOff+1}")
        for s in range(8):
            a(f"s_mov_b32 s{sT0}, {WS_O + s*1024:#x}")
            a(f"buffer_load_dword v{vOv+8*m+s}, v{vTc}, s[{sW}:{sW+3}], s{sT0} offen")
    a(f"v_and_b32 v{vTa}, 7, v{vLane}")
    lane_masks(a, vTa, vMask)
    a("s_waitcnt vmcnt(0)")
    a(f"v_mov_b32 v{vTa}, v{vML}")
    for s in range(1, 8):
        a(f"v_max_f32 v{vTa}, v{vTa}, v{vML+2*s}")
    a(f"v_mov_b32 v{vTb}, 0")
    for s in range(8):
        a(f"v_sub_f32 v{vW+s}, v{vML+2*s}, v{vTa}")
        a(f"v_mul_f32 v{vW+s}, s{sC}, v{vW+s}")
        a(f"v_exp_f32 v{vW+s}, v{vW+s}")
        a("s_nop 0")
        a(f"v_fma_f32 v{vTb}, v{vW+s}, v{vML+2*s+1}, v{vTb}")
    a(f"v_rcp_f32 v{vTb}, v{vTb}")
    for m in range(4):
        a(f"v_mul_f32 v{vTc}, v{vW}, v{vOv+8*m}")
        for s in range(1, 8):
            a(f"v_fma_f32 v{vTc}, v{vW+s}, v{vOv+8*m+s}, v{vTc}")
        a(f"v_mul_f32 v{vTc}, v{vTc}, v{vTb}")
        a(f"v_cvt_pk_bf16_f32 v{vTc}, v{vTc}, v{vTc}")
        b0 = vBop + (m % 2) * 4
        for j in range(4):
            a(f"v_and_b32 v{b0+j}, v{vTc}, v{vMask+j}")
        a("s_nop 1")
        c = "0" if m == 0 else f"v[{vDa}:{vDa+3}]"
        a(f"v_mfma_f32_16x16x32_bf16 v[{vDa}:{vDa+3}], v[{vAo+4*m}:{vAo+4*m+3}], v[{b0}:{b0+3}], {c}")
    a(f"v_lshrrev_b32 v{vTb}, 4, v{vLane}")
    for m in range(5):
        a(f"v_lshl_or_b32 v{vTc}, v{vH+m}, 16, v{vH+m}")
        if m == 4:
            a(f"v_cmp_gt_u32 vcc, 2, v{vTb}")
            a("s_nop 1")
            a(f"v_cndmask_b32 v{vTc}, 0, v{vTc}, vcc")
        b0 = vBop + (m % 2) * 4
        for j in range(4):
            a(f"v_and_b32 v{b0+j}, v{vTc}, v{vMask+j}")
        a("s_nop 1")
        c = "0" if m == 0 else f"v[{vDb}:{vDb+3}]"
        a(f"v_mfma_f32_16x16x32_bf16 v[{vDb}:{vDb+3}], v[{vAd+4*m}:{vAd+4*m+3}], v[{b0}:{b0+3}], {c}")
    a("s_nop 7")
    a(f"v_sub_f32 v{vTa}, 1.0, v{vG}")
    for r in range(4):
        a(f"v_mul_f32 v{vDa+r}, v{vDa+r}, v{vG}")
        a(f"v_fma_f32 v{vDa+r}, v{vDb+r}, v{vTa}, v{vDa+r}")
    a(f"s_and_b32 s{sT0}, s2, 7")
    a(f"s_mul_i32 s{sT0}, s{sT0}, 5120")
    a(f"s_lshl_b32 s{sT1}, s{sWv}, 10")
    a(f"s_add_u32 s{sT0}, s{sT0}, s{sT1}")
    a(f"s_add_u32 s{sT0}, s{sT0}, {WS_ACC:#x}")
    a(f"v_lshlrev_b32 v{vTa}, 2, v{vLane}")
    for r in range(4):
        a(f"buffer_atomic_add_f32 v{vDa+r}, v{vTa}, s[{sW}:{sW+3}], s{sT0} offen offset:{256*r}")
    a("s_waitcnt vmcnt(0)")
    a("s_barrier")
    a(f"v_mov_b32 v{vTb}, 1")
    a(f"v_mov_b32 v{vTc}, 0")
    a(f"s_cmp_lg_u32 s{sWv}, 0")
    a(f"s_cbranch_scc1 {name}_wait")
    a("s_mov_b64 exec, 1")
    a(f"buffer_atomic_add v{vTb}, v{vTc}, s[{sDbg}:{sDbg+3}], 0 offen sc0")
    a("s_waitcnt vmcnt(0)")
    a(f"ds_write_b32 v{vTc}, v{vTb}")
    a("s_waitcnt lgkmcnt(0)")
    a("s_mov_b64 exec, -1")
    a.lab(f"{name}_wait")
    a("s_barrier")
    a(f"v_mov_b32 v{vTc}, 0")
    a(f"ds_read_b32 v{vTb}, v{vTc}")
    a("s_waitcnt lgkmcnt(0)")
    a(f"v_readfirstlane_b32 s{sT0}, v{vTb}")
    a(f"s_cmp_lg_u32 s{sT0}, {NWG-1}")
    a(f"s_cbranch_scc1 {name}_end")
    a(f"s_lshl_b32 s{sT1}, s{sWv}, 10")
    a(f"s_add_u32 s{sT1}, s{sT1}, {WS_ACC:#x}")
    for rep in range(8):
        for r in range(4):
            a(f"buffer_load_dword v{vOv+rep*4+r}, v{vTa}, s[{sW}:{sW+3}], s{sT1} offen offset:{256*r} sc0 sc1")
        a(f"s_add_u32 s{sT1}, s{sT1}, 5120")
    a("s_waitcnt vmcnt(0)")
    for r in range(4):
        for rep in range(1, 8):
            a(f"v_add_f32 v{vOv+r}, v{vOv+r}, v{vOv+rep*4+r}")
    a(f"v_lshrrev_b32 v{vTa}, 4, v{vLane}")
    a(f"v_lshlrev_b32 v{vTa}, 5, v{vTa}")
    a(f"v_and_b32 v{vTb}, 7, v{vLane}")
    a(f"v_add_u32 v{vTa}, v{vTa}, v{vTb}")
    a(f"s_lshl_b32 s{sT0}, s{sWv}, 7")
    a(f"v_add_u32 v{vTa}, s{sT0}, v{vTa}")
    a(f"v_bfe_u32 v{vTb}, v{vLane}, 3, 1")
    a(f"v_mul_u32_u24 v{vTb}, 576, v{vTb}")
    for r in range(4):
        a(f"v_add_u32 v{vTc}, {8*r}, v{vTa}")
        a(f"v_cmp_gt_u32 vcc, 576, v{vTc}")
        a(f"v_add_u32 v{vTc}, v{vTc}, v{vTb}")
        a(f"v_lshlrev_b32 v{vTc}, 1, v{vTc}")
        a(f"v_mov_b32 v{vOff}, 0x7ffffff0")
        a(f"v_cndmask_b32 v{vTc}, v{vOff}, v{vTc}, vcc")
        a(f"v_cvt_pk_bf16_f32 v{vOff+1}, v{vOv+r}, v{vOv+r}")
        a(f"buffer_store_short v{vOff+1}, v{vTc}, s[{sOut}:{sOut+3}], 0 offen")
    a("s_waitcnt vmcnt(0)")
    a.lab(f"{name}_end")
    a("s_endpgm")
    return a.text(), nv, 40, (NWG, 320), 64

def kd(name, nv, ns):
    acc = (nv + 3) // 4 * 4
    return f""".amdhsa_kernel {name}
  .amdhsa_next_free_vgpr {nv}
  .amdhsa_next_free_sgpr {ns}
  .amdhsa_accum_offset {acc}
  .amdhsa_group_segment_fixed_size 0
  .amdhsa_kernarg_size 104
  .amdhsa_user_sgpr_count 2
  .amdhsa_user_sgpr_kernarg_segment_ptr 1
  .amdhsa_system_sgpr_workgroup_id_x 1
.end_amdhsa_kernel
"""

def main():
    out = sys.argv[1]
    ks = []
    n1, n2, n3 = f"{PFX}_a_kernel", f"{PFX}_b_kernel", f"{PFX}_c_kernel"
    ks.append((n1,) + gen_k1(n1))
    ks.append((n2,) + gen_k2(n2))
    ks.append((n3,) + gen_k3(n3))
    s = "; generated by dev/gen.py\n"
    for (n, t, nv, ns, (g, b), lds) in ks:
        s += f"; @launch kernel={n} grid=({g},1,1) block=({b},1,1) lds={lds}\n"
    s += '.amdgcn_target "amdgcn-amd-amdhsa--gfx950"\n.text\n'
    for (n, t, nv, ns, gb, lds) in ks:
        s += f".globl {n}\n.p2align 8\n.type {n},@function\n{n}:\n{t}"
    s += '.section .rodata,"a"\n'
    for (n, t, nv, ns, gb, lds) in ks:
        s += ".p2align 6\n" + kd(n, nv, ns)
    open(out, "w").write(s)

main()
```

```python
import sys, math, struct

PFX = "gmix"

def f2u(x):
    return struct.unpack("<I", struct.pack("<f", x))[0]

class A:
    def __init__(self):
        self.l = []
    def __call__(self, s):
        self.l.append("    " + s)
    def lab(self, s):
        self.l.append(s + ":")
    def c(self, s):
        self.l.append("    ; " + s)
    def text(self):
        return "\n".join(self.l) + "\n"

WS_Q = 0x0
WS_H = 0x8000
WS_G = 0x10000
WS_ACC = 0x20000
WS_ML = 0x40000
WS_O = 0x80000
WS_QP = 0xA0000
WS_FP = 0xC0000
WS_SIZE = 0x100000

KARG = dict(x=0, k=8, v=16, wq=24, wo=32, bx=40, wg=48, wu=56, wd=64, gw=72, out=80, dbg=88, ws=96)

SCALE = math.log2(math.e) / math.sqrt(128.0)

def srd(a, sd, sbase, nbytes):
    a(f"s_mov_b32 s{sd}, s{sbase}")
    a(f"s_and_b32 s{sd+1}, s{sbase+1}, 0xffff")
    a(f"s_mov_b32 s{sd+2}, {nbytes}")
    a(f"s_mov_b32 s{sd+3}, 0x00020000")

def lane_masks(a, vl8, vm):
    a(f"v_lshrrev_b32 v{vm+3}, 1, v{vl8}")
    a(f"v_and_b32 v{vm+2}, 1, v{vl8}")
    a(f"v_mov_b32 v{vm+1}, 0xffff")
    a(f"v_mov_b32 v{vm}, 0xffff0000")
    a(f"v_cmp_eq_u32 vcc, 1, v{vm+2}")
    a("s_nop 1")
    a(f"v_cndmask_b32 v{vm+2}, v{vm+1}, v{vm}, vcc")
    tmp_half = vm + 2
    a(f"v_mov_b32 v{vm}, v{vm+3}")
    a(f"v_mov_b32 v{vm+1}, v{tmp_half}")
    a(f"v_cmp_eq_u32 vcc, 3, v{vm}")
    a("s_nop 1")
    a(f"v_cndmask_b32 v{vm+3}, 0, v{vm+1}, vcc")
    a(f"v_cmp_eq_u32 vcc, 2, v{vm}")
    a("s_nop 1")
    a(f"v_cndmask_b32 v{vm+2}, 0, v{vm+1}, vcc")
    a(f"v_cmp_eq_u32 vcc, 1, v{vm}")
    a(f"v_mov_b32 v{vm+4}, v{vm+1}")
    a("s_nop 0")
    a(f"v_cndmask_b32 v{vm+1}, 0, v{vm+4}, vcc")
    a(f"v_cmp_eq_u32 vcc, 0, v{vm}")
    a("s_nop 1")
    a(f"v_cndmask_b32 v{vm}, 0, v{vm+4}, vcc")

def gen_k2(name, NW=8, T=2, nt=True):
    a = A()
    NWG = 256
    KEYS_PER_WAVE = 32768 * 32 // (NWG * NW)
    STEP = 16 * T
    NSTEP = KEYS_PER_WAVE // STEP
    ntm = " nt" if nt else ""
    sK, sV, sW = 4, 8, 12
    sOff, sOff2, sCnt, sWv, sC, sT0, sT1 = 16, 17, 18, 19, 20, 21, 22
    vLane = 1
    vKoff, vVoff = 2, 3
    vMask = 4
    vM, vL, vAlpha, vMC, vTa, vTb = 9, 10, 11, 12, 13, 14
    vO = 16
    vQ = 20
    vS = 36
    vP = vS + 4 * T
    vB = vP + 4 * T
    vB = (vB + 1) // 2 * 2
    vKb = vB + 8
    vVb = vKb + 2 * 16 * T
    nv = vVb + 2 * 16 * T
    a.c("attention partials: each wave streams %d keys" % KEYS_PER_WAVE)
    a(f"s_cmp_ge_u32 s2, {NWG}")
    a(f"s_cbranch_scc1 {name}_end")
    a(f"s_load_dwordx4 s[24:27], s[0:1], {KARG['k']}")
    a(f"s_load_dwordx2 s[28:29], s[0:1], {KARG['ws']}")
    a(f"v_and_b32 v{vLane}, 63, v0")
    a(f"v_lshrrev_b32 v{vTa}, 6, v0")
    a("s_nop 0")
    a(f"v_readfirstlane_b32 s{sWv}, v{vTa}")
    a("s_waitcnt lgkmcnt(0)")
    srd(a, sK, 24, 268435456)
    srd(a, sV, 26, 268435456)
    srd(a, sW, 28, WS_SIZE)
    a(f"s_and_b32 s{sT0}, s2, 7")
    a(f"s_lshl_b32 s{sT0}, s{sT0}, 1")
    a(f"s_bfe_u32 s{sT1}, s2, 0x10003")
    a(f"s_add_u32 s{sT0}, s{sT0}, s{sT1}")
    a(f"s_bfe_u32 s{sT1}, s2, 0x10004")
    a(f"s_lshl_b32 s{sT1}, s{sT1}, 4")
    a(f"s_add_u32 s{sT0}, s{sT0}, s{sT1}")
    a(f"s_lshr_b32 s{sT1}, s2, 5")
    a(f"s_mul_i32 s{sT1}, s{sT1}, {NW}")
    a(f"s_add_u32 s{sT1}, s{sT1}, s{sWv}")
    a(f"s_mul_i32 s{sT1}, s{sT1}, {KEYS_PER_WAVE * 256}")
    a(f"s_lshl_b32 s{sOff}, s{sT0}, 23")
    a(f"s_add_u32 s{sOff}, s{sOff}, s{sT1}")
    a(f"s_mov_b32 s{sC}, {f2u(SCALE):#x}")
    a(f"v_and_b32 v{vTa}, 15, v{vLane}")
    a(f"v_lshrrev_b32 v{vTb}, 4, v{vLane}")
    a(f"v_lshlrev_b32 v{vKoff}, 8, v{vTa}")
    a(f"v_lshl_add_u32 v{vKoff}, v{vTb}, 4, v{vKoff}")
    a(f"v_lshlrev_b32 v{vVoff}, 10, v{vTb}")
    a(f"v_lshl_add_u32 v{vVoff}, v{vTa}, 4, v{vVoff}")
    a(f"v_lshrrev_b32 v{vM}, 3, v{vTa}")
    a(f"s_lshl_b32 s{sT0}, s{sT0}, 1")
    a(f"v_add_u32 v{vM}, s{sT0}, v{vM}")
    a(f"v_lshlrev_b32 v{vM}, 9, v{vM}")
    a(f"v_lshl_add_u32 v{vM}, v{vTb}, 5, v{vM}")
    for i in range(4):
        for qq in range(4):
            a(f"s_mov_b32 s{sT1}, {WS_QP + qq*32768:#x}")
            r0 = vKb + qq * 8
            a(f"buffer_load_dwordx4 v[{r0}:{r0+3}], v{vM}, s[{sW}:{sW+3}], s{sT1} offen offset:{i*128}")
            a(f"buffer_load_dwordx4 v[{r0+4}:{r0+7}], v{vM}, s[{sW}:{sW+3}], s{sT1} offen offset:{i*128+16}")
        a("s_waitcnt vmcnt(0)")
        for e in range(8):
            for qq in range(1, 4):
                a(f"v_add_f32 v{vKb+e}, v{vKb+e}, v{vKb+qq*8+e}")
        for e in range(4):
            a(f"v_cvt_pk_bf16_f32 v{vQ+4*i+e}, v{vKb+2*e}, v{vKb+2*e+1}")
    a(f"v_and_b32 v{vTa}, 7, v{vLane}")
    lane_masks(a, vTa, vMask)
    a(f"v_mov_b32 v{vM}, 0xff800000")
    a(f"v_mov_b32 v{vL}, 0")
    for r in range(4):
        a(f"v_mov_b32 v{vO+r}, 0")

    def issue(buf):
        a(f"s_add_u32 s{sOff2}, s{sOff}, 0")
        for t in range(T):
            so = sOff if t == 0 else sOff2
            if t > 0:
                a(f"s_add_u32 s{sOff2}, s{sOff}, {4096*t}")
            for i in range(4):
                r0 = vKb + buf * 16 * T + t * 16 + i * 4
                a(f"buffer_load_dwordx4 v[{r0}:{r0+3}], v{vKoff}, s[{sK}:{sK+3}], s{so} offen offset:{i*64}{ntm}")
        for t in range(T):
            so = sOff if t == 0 else sOff2
            if t > 0:
                a(f"s_add_u32 s{sOff2}, s{sOff}, {4096*t}")
            for r in range(4):
                r0 = vVb + buf * 16 * T + t * 16 + r * 4
                a(f"buffer_load_dwordx4 v[{r0}:{r0+3}], v{vVoff}, s[{sV}:{sV+3}], s{so} offen offset:{r*256}{ntm}")
        a(f"s_add_u32 s{sOff}, s{sOff}, {4096*T}")

    def compute(buf, last):
        NL = 4 * T
        a(f"s_waitcnt vmcnt({NL if last else 3*NL})")
        for t in range(T):
            for i in range(4):
                r0 = vKb + buf * 16 * T + t * 16 + i * 4
                src = "0" if i == 0 else f"v[{vS+4*t}:{vS+4*t+3}]"
                a(f"v_mfma_f32_16x16x32_bf16 v[{vS+4*t}:{vS+4*t+3}], v[{r0}:{r0+3}], v[{vQ+4*i}:{vQ+4*i+3}], {src}")
        a("s_nop 7")
        regs = [vS + i for i in range(4 * T)]
        a(f"v_max3_f32 v{vTa}, v{regs[0]}, v{regs[1]}, v{regs[2]}")
        rest = regs[3:]
        while rest:
            if len(rest) >= 2:
                a(f"v_max3_f32 v{vTa}, v{vTa}, v{rest[0]}, v{rest[1]}")
                rest = rest[2:]
            else:
                a(f"v_max_f32 v{vTa}, v{vTa}, v{rest[0]}")
                rest = rest[1:]
        a(f"v_mov_b32 v{vTb}, v{vTa}")
        a("s_nop 1")
        a(f"v_permlane32_swap_b32 v{vTa}, v{vTb}")
        a(f"v_max_f32 v{vTa}, v{vTa}, v{vTb}")
        a(f"v_mov_b32 v{vTb}, v{vTa}")
        a("s_nop 1")
        a(f"v_permlane16_swap_b32 v{vTa}, v{vTb}")
        a(f"v_max_f32 v{vTa}, v{vTa}, v{vTb}")
        a(f"v_max_f32 v{vTb}, v{vM}, v{vTa}")
        a(f"v_sub_f32 v{vTa}, v{vM}, v{vTb}")
        a(f"v_mul_f32 v{vTa}, s{sC}, v{vTa}")
        a(f"v_exp_f32 v{vAlpha}, v{vTa}")
        a(f"v_mul_f32 v{vMC}, s{sC}, v{vTb}")
        a(f"v_mov_b32 v{vM}, v{vTb}")
        for i in range(4 * T):
            a(f"v_fma_f32 v{vP+i}, v{vS+i}, s{sC}, -v{vMC}")
        for i in range(4 * T):
            a(f"v_exp_f32 v{vP+i}, v{vP+i}")
        for r in range(4):
            a(f"v_mul_f32 v{vO+r}, v{vO+r}, v{vAlpha}")
        a(f"v_fma_f32 v{vL}, v{vL}, v{vAlpha}, v{vP}")
        for i in range(1, 4 * T):
            a(f"v_add_f32 v{vL}, v{vL}, v{vP+i}")
        a(f"s_waitcnt vmcnt({0 if last else 2*NL})")
        for t in range(T):
            for r in range(4):
                k = t * 4 + r
                b0 = vB + (k % 2) * 4
                a(f"v_cvt_pk_bf16_f32 v{vTa}, v{vP+k}, v{vP+k}")
                for j in range(4):
                    a(f"v_and_b32 v{b0+j}, v{vTa}, v{vMask+j}")
                a("s_nop 1")
                r0 = vVb + buf * 16 * T + t * 16 + r * 4
                a(f"v_mfma_f32_16x16x32_bf16 v[{vO}:{vO+3}], v[{r0}:{r0+3}], v[{b0}:{b0+3}], v[{vO}:{vO+3}]")

    issue(0)
    a(f"s_mov_b32 s{sCnt}, {NSTEP // 2 - 1}")
    a.lab(f"{name}_loop")
    issue(1)
    compute(0, False)
    issue(0)
    compute(1, False)
    a(f"s_sub_u32 s{sCnt}, s{sCnt}, 1")
    a(f"s_cmp_lg_u32 s{sCnt}, 0")
    a(f"s_cbranch_scc1 {name}_loop")
    issue(1)
    compute(0, False)
    compute(1, True)
    a("s_nop 7")
    a(f"v_mov_b32 v{vTb}, v{vL}")
    a("s_nop 1")
    a(f"v_permlane32_swap_b32 v{vL}, v{vTb}")
    a(f"v_add_f32 v{vL}, v{vL}, v{vTb}")
    a(f"v_mov_b32 v{vTb}, v{vL}")
    a("s_nop 1")
    a(f"v_permlane16_swap_b32 v{vL}, v{vTb}")
    a(f"v_add_f32 v{vL}, v{vL}, v{vTb}")
    a(f"s_lshl_b32 s{sT0}, s{sWv}, 10")
    a(f"v_lshl_add_u32 v{vTa}, v{vLane}, 4, s{sT0}")
    a(f"ds_write_b128 v{vTa}, v[{vO}:{vO+3}]")
    a(f"v_and_b32 v{vTb}, 8, v{vLane}")
    a(f"s_lshl_b32 s{sT0}, s{sWv}, 4")
    a(f"s_add_u32 s{sT0}, s{sT0}, {NW*1024}")
    a(f"v_add_u32 v{vTb}, s{sT0}, v{vTb}")
    a(f"v_mov_b32 v{vS}, v{vM}")
    a(f"v_mov_b32 v{vS+1}, v{vL}")
    a(f"ds_write_b64 v{vTb}, v[{vS}:{vS+1}]")
    a("s_waitcnt lgkmcnt(0)")
    a("s_barrier")
    a(f"s_cmp_lg_u32 s{sWv}, 0")
    a(f"s_cbranch_scc1 {name}_end")
    vm = vKb
    vo = vVb
    assert NW * 4 <= 2 * 16 * T and NW * 2 <= 2 * 16 * T
    a(f"v_and_b32 v{vTb}, 8, v{vLane}")
    for w in range(NW):
        a(f"ds_read_b64 v[{vm+2*w}:{vm+2*w+1}], v{vTb} offset:{NW*1024 + w*16}")
    a(f"v_lshlrev_b32 v{vTa}, 4, v{vLane}")
    for w in range(NW):
        a(f"ds_read_b128 v[{vo+4*w}:{vo+4*w+3}], v{vTa} offset:{w*1024}")
    a("s_waitcnt lgkmcnt(0)")
    a(f"v_mov_b32 v{vM}, v{vm}")
    for w in range(1, NW):
        a(f"v_max_f32 v{vM}, v{vM}, v{vm+2*w}")
    a(f"v_mov_b32 v{vL}, 0")
    for r in range(4):
        a(f"v_mov_b32 v{vO+r}, 0")
    for w in range(NW):
        a(f"v_sub_f32 v{vTa}, v{vm+2*w}, v{vM}")
        a(f"v_mul_f32 v{vTa}, s{sC}, v{vTa}")
        a(f"v_exp_f32 v{vTa}, v{vTa}")
        a("s_nop 0")
        a(f"v_fma_f32 v{vL}, v{vTa}, v{vm+2*w+1}, v{vL}")
        for r in range(4):
            a(f"v_fma_f32 v{vO+r}, v{vTa}, v{vo+4*w+r}, v{vO+r}")
    a(f"s_lshl_b32 s{sT0}, s2, 10")
    a(f"v_lshl_add_u32 v{vTa}, v{vLane}, 4, s{sT0}")
    a(f"v_add_u32 v{vTa}, {WS_O:#x}, v{vTa}")
    a(f"buffer_store_dwordx4 v[{vO}:{vO+3}], v{vTa}, s[{sW}:{sW+3}], 0 offen")
    a(f"v_and_b32 v{vTb}, 8, v{vLane}")
    a(f"s_lshl_b32 s{sT0}, s2, 4")
    a(f"s_add_u32 s{sT0}, s{sT0}, {WS_ML:#x}")
    a(f"v_add_u32 v{vTb}, s{sT0}, v{vTb}")
    a(f"v_mov_b32 v{vS}, v{vM}")
    a(f"v_mov_b32 v{vS+1}, v{vL}")
    a(f"buffer_store_dwordx2 v[{vS}:{vS+1}], v{vTb}, s[{sW}:{sW+3}], 0 offen")
    a("s_waitcnt vmcnt(0)")
    a.lab(f"{name}_end")
    a("s_endpgm")
    return a.text(), nv, 32, (NWG, 64 * NW), NW * 1024 + NW * 16


def gen_ka(name, NW=8, T=2, nt=True, skipq=False):
    a = A()
    NWG = 256
    KEYS_PER_WAVE = 32768 * 32 // (NWG * NW)
    STEP = 16 * T
    NSTEP = KEYS_PER_WAVE // STEP
    ntm = " nt" if nt else ""
    sK, sV, sW, sX, sA = 4, 8, 12, 32, 36
    sOff, sOff2, sCnt, sWv, sC, sT0, sT1, sT2 = 16, 17, 18, 19, 20, 21, 22, 23
    vLane = 1
    vKoff, vVoff = 2, 3
    vMask = 4
    vM, vL, vAlpha, vMC, vTa, vTb, vTc = 9, 10, 11, 12, 13, 14, 15
    vO = 16
    vQ = 20
    vS = 36
    vP = vS + 4 * T
    vB = (vP + 4 * T + 1) // 2 * 2
    vKb = vB + 8
    vVb = vKb + 2 * 16 * T
    vEx = vVb + 2 * 16 * T
    NB = 16
    nv = vEx + 4 * NB
    pool = [vEx + 4 * i for i in range(NB)]
    vX = vS
    LDS_Q = NW * 3072
    a(f"s_cmp_ge_u32 s2, {NWG}")
    a(f"s_cbranch_scc1 {name}_end")
    a(f"s_load_dwordx4 s[24:27], s[0:1], {KARG['k']}")
    a(f"s_load_dwordx2 s[28:29], s[0:1], {KARG['ws']}")
    a(f"s_load_dwordx2 s[30:31], s[0:1], {KARG['x']}")
    a(f"s_load_dwordx2 s[40:41], s[0:1], {KARG['wq']}")
    a(f"s_load_dwordx4 s[44:47], s[0:1], {KARG['wg']}")
    a(f"v_and_b32 v{vLane}, 63, v0")
    a(f"v_lshrrev_b32 v{vTa}, 6, v0")
    a("s_nop 0")
    a(f"v_readfirstlane_b32 s{sWv}, v{vTa}")
    a("s_waitcnt lgkmcnt(0)")
    srd(a, sK, 24, 268435456)
    srd(a, sV, 26, 268435456)
    srd(a, sW, 28, WS_SIZE)
    srd(a, sX, 30, 2304)
    srd(a, sA, 40, 576 * 8192)
    a(f"s_and_b32 s{sT0}, s2, 7")
    a(f"s_lshl_b32 s{sT0}, s{sT0}, 1")
    a(f"s_bfe_u32 s{sT1}, s2, 0x10003")
    a(f"s_add_u32 s{sT0}, s{sT0}, s{sT1}")
    a(f"s_bfe_u32 s{sT1}, s2, 0x10004")
    a(f"s_lshl_b32 s{sT1}, s{sT1}, 4")
    a(f"s_add_u32 s{sT0}, s{sT0}, s{sT1}")
    a(f"s_lshr_b32 s{sT1}, s2, 5")
    a(f"s_mul_i32 s{sT1}, s{sT1}, {NW}")
    a(f"s_add_u32 s{sT1}, s{sT1}, s{sWv}")
    a(f"s_mul_i32 s{sT1}, s{sT1}, {KEYS_PER_WAVE * 256}")
    a(f"s_lshl_b32 s{sOff}, s{sT0}, 23")
    a(f"s_add_u32 s{sOff}, s{sOff}, s{sT1}")
    a(f"s_mov_b32 s{sC}, {f2u(SCALE):#x}")
    a(f"v_and_b32 v{vTa}, 15, v{vLane}")
    a(f"v_lshrrev_b32 v{vTb}, 4, v{vLane}")
    a(f"v_lshlrev_b32 v{vKoff}, 8, v{vTa}")
    a(f"v_lshl_add_u32 v{vKoff}, v{vTb}, 4, v{vKoff}")
    a(f"v_lshlrev_b32 v{vVoff}, 10, v{vTb}")
    a(f"v_lshl_add_u32 v{vVoff}, v{vTa}, 4, v{vVoff}")
    a(f"v_lshlrev_b32 v{vAlpha}, 13, v{vTb}")
    a(f"v_lshl_add_u32 v{vAlpha}, v{vTa}, 4, v{vAlpha}")
    a(f"v_lshrrev_b32 v{vMC}, 3, v{vTa}")
    a(f"v_mul_u32_u24 v{vMC}, 1152, v{vMC}")
    a(f"v_lshl_add_u32 v{vMC}, v{vTb}, 1, v{vMC}")
    a(f"s_mul_i32 s{sT1}, s{sWv}, 144")
    a(f"v_add_u32 v{vMC}, s{sT1}, v{vMC}")
    for m in range(18):
        a(f"buffer_load_ushort v{vQ+m}, v{vMC}, s[{sX}:{sX+3}], 0 offen offset:{8*m}")
    a(f"s_and_b32 s{sT1}, s{sT0}, 15")
    a(f"s_lshl_b32 s{sT1}, s{sT1}, 9")
    a(f"s_mul_i32 s{sT2}, s{sWv}, {72*8192}")
    a(f"s_add_u32 s{sT1}, s{sT1}, s{sT2}")
    jobs = [(m, cbk) for m in range(18) for cbk in range(2)]
    a(f"v_and_b32 v{vTa}, 7, v{vLane}")
    lane_masks(a, vTa, vMask)
    vD = [vP, vP + 4]
    vDF = vO
    first = True
    pos = 0
    kv_issued = False
    while pos < len(jobs):
        batch = jobs[pos:pos + NB]
        for i, (m, cbk) in enumerate(batch):
            a(f"s_add_u32 s{sT2}, s{sT1}, {m*4*8192 + cbk*256}")
            if not skipq:
                a(f"buffer_load_dwordx4 v[{pool[i]}:{pool[i]+3}], v{vAlpha}, s[{sA}:{sA+3}], s{sT2} offen")
        if not kv_issued:
            issue_kv0 = True
        else:
            issue_kv0 = False
        if issue_kv0:
            a.c("K/V step-0 prefetch")
            KVPLACE = len(a.l)
            a.l.append("@@KV0@@")
            kv_issued = True
            a(f"s_waitcnt vmcnt({16*T})")
        else:
            a("s_waitcnt vmcnt(0)")
        for i, (m, cbk) in enumerate(batch):
            if cbk == 0 or i == 0:
                b0 = vB + ((pos + i) // 2 % 2) * 4
                a(f"v_lshl_or_b32 v{vTa}, v{vQ+m}, 16, v{vQ+m}")
                for j in range(4):
                    a(f"v_and_b32 v{b0+j}, v{vTa}, v{vMask+j}")
                a("s_nop 1")
            b0 = vB + ((pos + i) // 2 % 2) * 4
            c = "0" if m == 0 else f"v[{vD[cbk]}:{vD[cbk]+3}]"
            a(f"v_mfma_f32_16x16x32_bf16 v[{vD[cbk]}:{vD[cbk]+3}], v[{pool[i]}:{pool[i]+3}], v[{b0}:{b0+3}], {c}")
        pos += NB
    a(f"s_cmp_ge_u32 s2, 216")
    a(f"s_cbranch_scc1 {name}_noffn")
    a(f"s_cmp_ge_u32 s2, 108")
    a(f"s_cselect_b32 s{sT0}, s46, s44")
    a(f"s_cselect_b32 s{sT1}, s47, s45")
    a(f"s_cselect_b32 s{sT2}, 108, 0")
    a(f"s_sub_u32 s{sT2}, s2, s{sT2}")
    a(f"s_mov_b32 s40, s{sT0}")
    a(f"s_mov_b32 s41, s{sT1}")
    srd(a, sA, 40, 576 * 9216)
    a(f"s_mul_hi_u32 s{sT0}, s{sT2}, 0x55555556")
    a(f"s_mul_i32 s{sT1}, s{sT0}, 3")
    a(f"s_sub_u32 s{sT1}, s{sT2}, s{sT1}")
    a(f"s_mul_i32 s{sT1}, s{sT1}, 192")
    a(f"s_mul_i32 s{sT2}, s{sWv}, 24")
    a(f"s_add_u32 s{sT1}, s{sT1}, s{sT2}")
    a(f"v_lshrrev_b32 v{vTb}, 4, v{vLane}")
    a(f"v_and_b32 v{vTa}, 15, v{vLane}")
    a(f"v_mul_u32_u24 v{vAlpha}, 9216, v{vTb}")
    a(f"v_lshl_add_u32 v{vAlpha}, v{vTa}, 4, v{vAlpha}")
    a(f"v_lshrrev_b32 v{vMC}, 3, v{vTa}")
    a(f"v_mul_u32_u24 v{vMC}, 1152, v{vMC}")
    a(f"v_lshl_add_u32 v{vMC}, v{vTb}, 1, v{vMC}")
    a(f"s_lshl_b32 s{sT2}, s{sT1}, 1")
    a(f"v_add_u32 v{vMC}, s{sT2}, v{vMC}")
    for m in range(6):
        a(f"buffer_load_ushort v{vQ+m}, v{vMC}, s[{sX}:{sX+3}], 0 offen offset:{8*m}")
    a(f"s_mul_i32 s{sT1}, s{sT1}, 9216")
    a(f"s_lshl_b32 s{sT2}, s{sT0}, 8")
    a(f"s_add_u32 s{sT1}, s{sT1}, s{sT2}")
    for m in range(6):
        a(f"s_add_u32 s{sT2}, s{sT1}, {m*4*9216}")
        a(f"buffer_load_dwordx4 v[{pool[m]}:{pool[m]+3}], v{vAlpha}, s[{sA}:{sA+3}], s{sT2} offen")
    a("s_waitcnt vmcnt(0)")
    for m in range(6):
        b0 = vB + (m % 2) * 4
        a(f"v_lshl_or_b32 v{vTa}, v{vQ+m}, 16, v{vQ+m}")
        for j in range(4):
            a(f"v_and_b32 v{b0+j}, v{vTa}, v{vMask+j}")
        a("s_nop 1")
        c = "0" if m == 0 else f"v[{vDF}:{vDF+3}]"
        a(f"v_mfma_f32_16x16x32_bf16 v[{vDF}:{vDF+3}], v[{pool[m]}:{pool[m]+3}], v[{b0}:{b0+3}], {c}")
    a.lab(f"{name}_noffn")
    a("s_nop 7")
    a(f"s_mul_i32 s{sT0}, s{sWv}, 3072")
    a(f"v_lshl_add_u32 v{vTa}, v{vLane}, 4, s{sT0}")
    a(f"ds_write_b128 v{vTa}, v[{vD[0]}:{vD[0]+3}]")
    a(f"ds_write_b128 v{vTa}, v[{vD[1]}:{vD[1]+3}] offset:1024")
    a(f"ds_write_b128 v{vTa}, v[{vDF}:{vDF+3}] offset:2048")
    a("s_waitcnt lgkmcnt(0)")
    a("s_barrier")
    a(f"s_cmp_ge_u32 s{sWv}, 4")
    a(f"s_cbranch_scc1 {name}_red_done")
    a(f"v_and_b32 v{vTa}, 127, v0")
    a(f"v_lshrrev_b32 v{vTb}, 7, v0")
    a(f"v_lshrrev_b32 v{vTc}, 5, v{vTa}")
    a(f"v_lshlrev_b32 v{vTc}, 8, v{vTc}")
    a(f"v_and_b32 v{vM}, 7, v{vTa}")
    a(f"v_lshl_add_u32 v{vTc}, v{vM}, 4, v{vTc}")
    a(f"v_bfe_u32 v{vM}, v{vTa}, 3, 2")
    a(f"v_lshl_add_u32 v{vTc}, v{vM}, 2, v{vTc}")
    a(f"s_bfe_u32 s{sT0}, s2, 0x10004")
    a(f"s_lshl_b32 s{sT0}, s{sT0}, 7")
    a(f"v_add_u32 v{vTc}, s{sT0}, v{vTc}")
    a(f"v_lshl_add_u32 v{vTc}, v{vTb}, 10, v{vTc}")
    for w in range(NW):
        a(f"ds_read_b32 v{vQ+w}, v{vTc} offset:{w*3072}")
    a(f"v_lshlrev_b32 v{vM}, 2, v0")
    for w in range(NW):
        a(f"ds_read_b32 v{vQ+8+w}, v{vM} offset:{w*3072+2048}")
    a("s_waitcnt lgkmcnt(0)")
    for w in range(1, NW):
        a(f"v_add_f32 v{vQ}, v{vQ}, v{vQ+w}")
        a(f"v_add_f32 v{vQ+8}, v{vQ+8}, v{vQ+8+w}")
    a(f"v_cvt_pk_bf16_f32 v{vQ}, v{vQ}, v{vQ}")
    a(f"v_lshlrev_b32 v{vTc}, 1, v0")
    a(f"ds_write_b16 v{vTc}, v{vQ} offset:{LDS_Q}")
    a(f"s_cmp_ge_u32 s2, 216")
    a(f"s_cbranch_scc1 {name}_red_done")
    a(f"s_cmp_ge_u32 s2, 108")
    a(f"s_cselect_b32 s{sT2}, 108, 0")
    a(f"s_cselect_b32 s{sT1}, 3, 0")
    a(f"s_sub_u32 s{sT2}, s2, s{sT2}")
    a(f"s_mul_hi_u32 s{sT0}, s{sT2}, 0x55555556")
    a(f"s_mul_i32 s{sOff2}, s{sT0}, 3")
    a(f"s_sub_u32 s{sT2}, s{sT2}, s{sOff2}")
    a(f"s_add_u32 s{sT1}, s{sT1}, s{sT2}")
    a(f"s_mul_i32 s{sT1}, s{sT1}, {2*4608*4}")
    a(f"s_lshl_b32 s{sT0}, s{sT0}, 9")
    a(f"s_add_u32 s{sT1}, s{sT1}, s{sT0}")
    a(f"s_add_u32 s{sT1}, s{sT1}, {WS_FP:#x}")
    a(f"v_lshrrev_b32 v{vTa}, 2, v0")
    a(f"v_and_b32 v{vTb}, 3, v0")
    a(f"v_lshrrev_b32 v{vTc}, 4, v{vTa}")
    a(f"v_lshl_add_u32 v{vTc}, v{vTc}, 2, v{vTb}")
    a(f"v_lshlrev_b32 v{vTc}, 3, v{vTc}")
    a(f"v_and_b32 v{vTb}, 7, v{vTa}")
    a(f"v_add_u32 v{vTc}, v{vTc}, v{vTb}")
    a(f"v_bfe_u32 v{vTb}, v{vTa}, 3, 1")
    a(f"v_mul_u32_u24 v{vTb}, 4608, v{vTb}")
    a(f"v_add_u32 v{vTc}, v{vTc}, v{vTb}")
    a(f"v_lshlrev_b32 v{vTc}, 2, v{vTc}")
    a(f"buffer_store_dword v{vQ+8}, v{vTc}, s[{sW}:{sW+3}], s{sT1} offen")
    a.lab(f"{name}_red_done")
    a(f"s_cmp_lt_u32 s2, 216")
    a(f"s_cbranch_scc1 {name}_misc_done")
    a(f"s_cmp_lg_u32 s{sWv}, 7")
    a(f"s_cbranch_scc1 {name}_misc2")
    a(f"s_sub_u32 s{sT0}, s2, 216")
    a(f"s_lshl_b32 s{sT0}, s{sT0}, 10")
    a(f"s_add_u32 s{sT0}, s{sT0}, {WS_ACC:#x}")
    a(f"v_lshlrev_b32 v{vTa}, 4, v{vLane}")
    for r in range(4):
        a(f"v_mov_b32 v{vQ+r}, 0")
    a(f"buffer_store_dwordx4 v[{vQ}:{vQ+3}], v{vTa}, s[{sW}:{sW+3}], s{sT0} offen")
    a.lab(f"{name}_misc2")
    a(f"s_cmp_lg_u32 s2, 255")
    a(f"s_cbranch_scc1 {name}_misc_done")
    a(f"s_cmp_lg_u32 s{sWv}, 6")
    a(f"s_cbranch_scc1 {name}_misc_done")
    a(f"s_load_dwordx2 s[40:41], s[0:1], {KARG['gw']}")
    a("s_waitcnt lgkmcnt(0)")
    srd(a, sA, 40, 1152)
    a(f"v_mul_u32_u24 v{vTa}, 18, v{vLane}")
    G0 = vEx
    for i in range(9):
        a(f"buffer_load_ushort v{G0+i}, v{vTa}, s[{sA}:{sA+3}], 0 offen offset:{2*i}")
        a(f"buffer_load_ushort v{G0+10+i}, v{vTa}, s[{sX}:{sX+3}], 0 offen offset:{2*i}")
        a(f"buffer_load_ushort v{G0+20+i}, v{vTa}, s[{sX}:{sX+3}], 0 offen offset:{1152+2*i}")
    a("s_waitcnt vmcnt(0)")
    a(f"v_mov_b32 v{vQ}, 0")
    a(f"v_mov_b32 v{vQ+1}, 0")
    for i in range(9):
        a(f"v_lshlrev_b32 v{G0+i}, 16, v{G0+i}")
        a(f"v_lshlrev_b32 v{G0+10+i}, 16, v{G0+10+i}")
        a(f"v_lshlrev_b32 v{G0+20+i}, 16, v{G0+20+i}")
        a(f"v_fma_f32 v{vQ}, v{G0+i}, v{G0+10+i}, v{vQ}")
        a(f"v_fma_f32 v{vQ+1}, v{G0+i}, v{G0+20+i}, v{vQ+1}")
    for sh in (32, 16, 8, 4, 2, 1):
        a(f"v_xor_b32 v{vTa}, {sh}, v{vLane}")
        a(f"v_lshlrev_b32 v{vTa}, 2, v{vTa}")
        a(f"ds_bpermute_b32 v{vTb}, v{vTa}, v{vQ}")
        a(f"ds_bpermute_b32 v{vTc}, v{vTa}, v{vQ+1}")
        a("s_waitcnt lgkmcnt(0)")
        a(f"v_add_f32 v{vQ}, v{vQ}, v{vTb}")
        a(f"v_add_f32 v{vQ+1}, v{vQ+1}, v{vTc}")
    a(f"s_mov_b32 s{sT0}, {f2u(-math.log2(math.e)):#x}")
    for r in range(2):
        a(f"v_mul_f32 v{vQ+r}, s{sT0}, v{vQ+r}")
        a(f"v_exp_f32 v{vQ+r}, v{vQ+r}")
        a("s_nop 0")
        a(f"v_add_f32 v{vQ+r}, 1.0, v{vQ+r}")
        a(f"v_rcp_f32 v{vQ+r}, v{vQ+r}")
    a(f"v_mov_b32 v{vTa}, {WS_G:#x}")
    a(f"buffer_store_dwordx2 v[{vQ}:{vQ+1}], v{vTa}, s[{sW}:{sW+3}], 0 offen")
    a.lab(f"{name}_misc_done")
    a("s_waitcnt lgkmcnt(0)")
    a("s_barrier")
    a(f"v_bfe_u32 v{vTa}, v{vLane}, 3, 1")
    a(f"v_lshlrev_b32 v{vTa}, 8, v{vTa}")
    a(f"v_lshrrev_b32 v{vTb}, 4, v{vLane}")
    a(f"v_lshl_add_u32 v{vTa}, v{vTb}, 4, v{vTa}")
    for i in range(4):
        a(f"ds_read_b128 v[{vQ+4*i}:{vQ+4*i+3}], v{vTa} offset:{LDS_Q + i*64}")
    a(f"v_mov_b32 v{vM}, 0xff800000")
    a(f"v_mov_b32 v{vL}, 0")
    for r in range(4):
        a(f"v_mov_b32 v{vO+r}, 0")
    a("s_waitcnt lgkmcnt(0)")

    def issue(buf, emit):
        emit(f"s_add_u32 s{sOff2}, s{sOff}, 4096")
        for t in range(T):
            so = sOff if t == 0 else sOff2
            for i in range(4):
                r0 = vKb + buf * 16 * T + t * 16 + i * 4
                emit(f"buffer_load_dwordx4 v[{r0}:{r0+3}], v{vKoff}, s[{sK}:{sK+3}], s{so} offen offset:{i*64}{ntm}")
        for t in range(T):
            so = sOff if t == 0 else sOff2
            for r in range(4):
                r0 = vVb + buf * 16 * T + t * 16 + r * 4
                emit(f"buffer_load_dwordx4 v[{r0}:{r0+3}], v{vVoff}, s[{sV}:{sV+3}], s{so} offen offset:{r*256}{ntm}")
        emit(f"s_add_u32 s{sOff}, s{sOff}, {4096*T}")
    assert T == 2
    kv0 = []
    issue(0, lambda s_: kv0.append("    " + s_))
    issue(1, lambda s_: kv0.append("    " + s_))
    a.l[KVPLACE:KVPLACE+1] = kv0

    def compute(buf, last):
        NL = 4 * T
        a(f"s_waitcnt vmcnt({NL if last else 3*NL})")
        for t in range(T):
            for i in range(4):
                r0 = vKb + buf * 16 * T + t * 16 + i * 4
                src = "0" if i == 0 else f"v[{vS+4*t}:{vS+4*t+3}]"
                a(f"v_mfma_f32_16x16x32_bf16 v[{vS+4*t}:{vS+4*t+3}], v[{r0}:{r0+3}], v[{vQ+4*i}:{vQ+4*i+3}], {src}")
        a("s_nop 7")
        regs = [vS + i for i in range(4 * T)]
        a(f"v_max3_f32 v{vTa}, v{regs[0]}, v{regs[1]}, v{regs[2]}")
        rest = regs[3:]
        while rest:
            if len(rest) >= 2:
                a(f"v_max3_f32 v{vTa}, v{vTa}, v{rest[0]}, v{rest[1]}")
                rest = rest[2:]
            else:
                a(f"v_max_f32 v{vTa}, v{vTa}, v{rest[0]}")
                rest = rest[1:]
        a(f"v_mov_b32 v{vTb}, v{vTa}")
        a("s_nop 1")
        a(f"v_permlane32_swap_b32 v{vTa}, v{vTb}")
        a(f"v_max_f32 v{vTa}, v{vTa}, v{vTb}")
        a(f"v_mov_b32 v{vTb}, v{vTa}")
        a("s_nop 1")
        a(f"v_permlane16_swap_b32 v{vTa}, v{vTb}")
        a(f"v_max_f32 v{vTa}, v{vTa}, v{vTb}")
        a(f"v_max_f32 v{vTb}, v{vM}, v{vTa}")
        a(f"v_sub_f32 v{vTa}, v{vM}, v{vTb}")
        a(f"v_mul_f32 v{vTa}, s{sC}, v{vTa}")
        a(f"v_exp_f32 v{vAlpha}, v{vTa}")
        a(f"v_mul_f32 v{vMC}, s{sC}, v{vTb}")
        a(f"v_mov_b32 v{vM}, v{vTb}")
        for i in range(4 * T):
            a(f"v_fma_f32 v{vP+i}, v{vS+i}, s{sC}, -v{vMC}")
        for i in range(4 * T):
            a(f"v_exp_f32 v{vP+i}, v{vP+i}")
        for r in range(4):
            a(f"v_mul_f32 v{vO+r}, v{vO+r}, v{vAlpha}")
        a(f"v_fma_f32 v{vL}, v{vL}, v{vAlpha}, v{vP}")
        for i in range(1, 4 * T):
            a(f"v_add_f32 v{vL}, v{vL}, v{vP+i}")
        a(f"s_waitcnt vmcnt({0 if last else 2*NL})")
        for t in range(T):
            for r in range(4):
                k = t * 4 + r
                b0 = vB + (k % 2) * 4
                a(f"v_cvt_pk_bf16_f32 v{vTa}, v{vP+k}, v{vP+k}")
                for j in range(4):
                    a(f"v_and_b32 v{b0+j}, v{vTa}, v{vMask+j}")
                a("s_nop 1")
                r0 = vVb + buf * 16 * T + t * 16 + r * 4
                a(f"v_mfma_f32_16x16x32_bf16 v[{vO}:{vO+3}], v[{r0}:{r0+3}], v[{b0}:{b0+3}], v[{vO}:{vO+3}]")

    a(f"s_mov_b32 s{sCnt}, {NSTEP // 2 - 1}")
    a.lab(f"{name}_loop")
    compute(0, False)
    issue(0, a)
    compute(1, False)
    issue(1, a)
    a(f"s_sub_u32 s{sCnt}, s{sCnt}, 1")
    a(f"s_cmp_lg_u32 s{sCnt}, 0")
    a(f"s_cbranch_scc1 {name}_loop")
    compute(0, False)
    compute(1, True)
    a("s_nop 7")
    a(f"v_mov_b32 v{vTb}, v{vL}")
    a("s_nop 1")
    a(f"v_permlane32_swap_b32 v{vL}, v{vTb}")
    a(f"v_add_f32 v{vL}, v{vL}, v{vTb}")
    a(f"v_mov_b32 v{vTb}, v{vL}")
    a("s_nop 1")
    a(f"v_permlane16_swap_b32 v{vL}, v{vTb}")
    a(f"v_add_f32 v{vL}, v{vL}, v{vTb}")
    a(f"s_lshl_b32 s{sT0}, s{sWv}, 10")
    a(f"v_lshl_add_u32 v{vTa}, v{vLane}, 4, s{sT0}")
    a(f"ds_write_b128 v{vTa}, v[{vO}:{vO+3}]")
    a(f"v_and_b32 v{vTb}, 8, v{vLane}")
    a(f"s_lshl_b32 s{sT0}, s{sWv}, 4")
    a(f"s_add_u32 s{sT0}, s{sT0}, {NW*1024}")
    a(f"v_add_u32 v{vTb}, s{sT0}, v{vTb}")
    a(f"v_mov_b32 v{vS}, v{vM}")
    a(f"v_mov_b32 v{vS+1}, v{vL}")
    a(f"ds_write_b64 v{vTb}, v[{vS}:{vS+1}]")
    a("s_waitcnt lgkmcnt(0)")
    a("s_barrier")
    a(f"s_cmp_lg_u32 s{sWv}, 0")
    a(f"s_cbranch_scc1 {name}_end")
    vm = vKb
    vo = vVb
    a(f"v_and_b32 v{vTb}, 8, v{vLane}")
    for w in range(NW):
        a(f"ds_read_b64 v[{vm+2*w}:{vm+2*w+1}], v{vTb} offset:{NW*1024 + w*16}")
    a(f"v_lshlrev_b32 v{vTa}, 4, v{vLane}")
    for w in range(NW):
        a(f"ds_read_b128 v[{vo+4*w}:{vo+4*w+3}], v{vTa} offset:{w*1024}")
    a("s_waitcnt lgkmcnt(0)")
    a(f"v_mov_b32 v{vM}, v{vm}")
    for w in range(1, NW):
        a(f"v_max_f32 v{vM}, v{vM}, v{vm+2*w}")
    a(f"v_mov_b32 v{vL}, 0")
    for r in range(4):
        a(f"v_mov_b32 v{vO+r}, 0")
    for w in range(NW):
        a(f"v_sub_f32 v{vTa}, v{vm+2*w}, v{vM}")
        a(f"v_mul_f32 v{vTa}, s{sC}, v{vTa}")
        a(f"v_exp_f32 v{vTa}, v{vTa}")
        a("s_nop 0")
        a(f"v_fma_f32 v{vL}, v{vTa}, v{vm+2*w+1}, v{vL}")
        for r in range(4):
            a(f"v_fma_f32 v{vO+r}, v{vTa}, v{vo+4*w+r}, v{vO+r}")
    a(f"s_lshl_b32 s{sT0}, s2, 10")
    a(f"v_lshl_add_u32 v{vTa}, v{vLane}, 4, s{sT0}")
    a(f"v_add_u32 v{vTa}, {WS_O:#x}, v{vTa}")
    a(f"buffer_store_dwordx4 v[{vO}:{vO+3}], v{vTa}, s[{sW}:{sW+3}], 0 offen")
    a(f"v_and_b32 v{vTb}, 8, v{vLane}")
    a(f"s_lshl_b32 s{sT0}, s2, 4")
    a(f"s_add_u32 s{sT0}, s{sT0}, {WS_ML:#x}")
    a(f"v_add_u32 v{vTb}, s{sT0}, v{vTb}")
    a(f"v_mov_b32 v{vS}, v{vM}")
    a(f"v_mov_b32 v{vS+1}, v{vL}")
    a(f"buffer_store_dwordx2 v[{vS}:{vS+1}], v{vTb}, s[{sW}:{sW+3}], 0 offen")
    a("s_waitcnt vmcnt(0)")
    a.lab(f"{name}_end")
    a("s_endpgm")
    return a.text(), nv, 48, (NWG, 64 * NW), LDS_Q + 512


def gen_k1b(name):
    a = A()
    NW = 4
    sW, sX, sA = 4, 8, 12
    sWv, sT0, sT1, sT2, sRS, sRow0, sColB, sDst = 16, 17, 18, 19, 20, 21, 22, 23
    vLane, vTa, vTb, vTc, vAoff, vXoff = 1, 2, 3, 4, 5, 6
    vMask = 8
    vD = 14
    vBop = 18
    vX = 26
    vA0 = 38
    nv = vA0 + 48
    NJ = 128 + 216
    a(f"s_cmp_ge_u32 s2, {NJ + 1}")
    a(f"s_cbranch_scc1 {name}_end")
    a(f"s_load_dwordx2 s[24:25], s[0:1], {KARG['x']}")
    a(f"s_load_dwordx2 s[26:27], s[0:1], {KARG['ws']}")
    a(f"s_load_dwordx2 s[28:29], s[0:1], {KARG['wq']}")
    a(f"s_load_dwordx4 s[32:35], s[0:1], {KARG['wg']}")
    a(f"v_and_b32 v{vLane}, 63, v0")
    a(f"v_lshrrev_b32 v{vTa}, 6, v0")
    a("s_nop 0")
    a(f"v_readfirstlane_b32 s{sWv}, v{vTa}")
    a("s_waitcnt lgkmcnt(0)")
    srd(a, sW, 26, WS_SIZE)
    srd(a, sX, 24, 2304)
    a(f"s_cmp_eq_u32 s2, {NJ}")
    a(f"s_cbranch_scc1 {name}_misc")
    a(f"s_cmp_lt_u32 s2, 128")
    a(f"s_cbranch_scc1 {name}_q")
    a(f"s_sub_u32 s{sT0}, s2, 128")
    a(f"s_cmp_ge_u32 s{sT0}, 108")
    a(f"s_cselect_b32 s30, s34, s32")
    a(f"s_cselect_b32 s31, s35, s33")
    a(f"s_cselect_b32 s{sT1}, 108, 0")
    a(f"s_cselect_b32 s{sDst}, 3, 0")
    a(f"s_sub_u32 s{sT0}, s{sT0}, s{sT1}")
    srd(a, sA, 30, 576 * 9216)
    a(f"s_mul_hi_u32 s{sColB}, s{sT0}, 0x55555556")
    a(f"s_mul_i32 s{sT1}, s{sColB}, 3")
    a(f"s_sub_u32 s{sT1}, s{sT0}, s{sT1}")
    a(f"s_add_u32 s{sDst}, s{sDst}, s{sT1}")
    a(f"s_mul_i32 s{sDst}, s{sDst}, {2*4608*4}")
    a(f"s_add_u32 s{sDst}, s{sDst}, {WS_FP:#x}")
    a(f"s_mul_i32 s{sRow0}, s{sT1}, 192")
    a(f"s_mul_i32 s{sT1}, s{sWv}, 48")
    a(f"s_add_u32 s{sRow0}, s{sRow0}, s{sT1}")
    a(f"s_mov_b32 s{sRS}, 9216")
    a(f"s_mov_b32 s{sT2}, 4608")
    a(f"s_branch {name}_gemv")
    a.lab(f"{name}_q")
    srd(a, sA, 28, 576 * 8192)
    a(f"s_lshr_b32 s{sColB}, s2, 2")
    a(f"s_and_b32 s{sT1}, s2, 3")
    a(f"s_mul_i32 s{sDst}, s{sT1}, {2*4096*4}")
    a(f"s_add_u32 s{sDst}, s{sDst}, {WS_QP:#x}")
    a(f"s_mul_i32 s{sRow0}, s{sT1}, 144")
    a(f"s_mul_i32 s{sT1}, s{sWv}, 36")
    a(f"s_add_u32 s{sRow0}, s{sRow0}, s{sT1}")
    a(f"s_mov_b32 s{sRS}, 8192")
    a(f"s_mov_b32 s{sT2}, 4096")
    a.lab(f"{name}_gemv")
    a(f"v_and_b32 v{vTa}, 15, v{vLane}")
    a(f"v_lshrrev_b32 v{vTb}, 4, v{vLane}")
    a(f"v_mul_lo_u32 v{vAoff}, v{vTb}, s{sRS}")
    a(f"v_lshl_add_u32 v{vAoff}, v{vTa}, 4, v{vAoff}")
    a(f"v_lshrrev_b32 v{vXoff}, 3, v{vTa}")
    a(f"v_mul_u32_u24 v{vXoff}, 1152, v{vXoff}")
    a(f"v_lshl_add_u32 v{vXoff}, v{vTb}, 1, v{vXoff}")
    a(f"s_lshl_b32 s{sT0}, s{sRow0}, 1")
    a(f"v_add_u32 v{vXoff}, s{sT0}, v{vXoff}")
    for m in range(12):
        a(f"buffer_load_ushort v{vX+m}, v{vXoff}, s[{sX}:{sX+3}], 0 offen offset:{8*m}")
    a(f"s_mul_i32 s{sT0}, s{sRow0}, s{sRS}")
    a(f"s_lshl_b32 s{sT1}, s{sColB}, 8")
    a(f"s_add_u32 s{sT0}, s{sT0}, s{sT1}")
    a(f"s_lshl_b32 s{sT1}, s{sRS}, 2")
    for m in range(12):
        a(f"buffer_load_dwordx4 v[{vA0+4*m}:{vA0+4*m+3}], v{vAoff}, s[{sA}:{sA+3}], s{sT0} offen")
        a(f"s_add_u32 s{sT0}, s{sT0}, s{sT1}")
    a(f"v_and_b32 v{vTa}, 7, v{vLane}")
    lane_masks(a, vTa, vMask)
    a(f"s_cmp_eq_u32 s{sRS}, 8192")
    a(f"s_cselect_b32 s{sT0}, 0, -1")
    a("s_waitcnt vmcnt(0)")
    for m in range(12):
        if m >= 9:
            a(f"v_and_b32 v{vX+m}, s{sT0}, v{vX+m}")
        b0 = vBop + (m % 2) * 4
        a(f"v_lshl_or_b32 v{vTa}, v{vX+m}, 16, v{vX+m}")
        for j in range(4):
            a(f"v_and_b32 v{b0+j}, v{vTa}, v{vMask+j}")
        a("s_nop 1")
        c = "0" if m == 0 else f"v[{vD}:{vD+3}]"
        a(f"v_mfma_f32_16x16x32_bf16 v[{vD}:{vD+3}], v[{vA0+4*m}:{vA0+4*m+3}], v[{b0}:{b0+3}], {c}")
    a("s_nop 7")
    a(f"s_lshl_b32 s{sT0}, s{sWv}, 10")
    a(f"v_lshl_add_u32 v{vTa}, v{vLane}, 4, s{sT0}")
    a(f"ds_write_b128 v{vTa}, v[{vD}:{vD+3}]")
    a("s_waitcnt lgkmcnt(0)")
    a("s_barrier")
    a(f"v_lshlrev_b32 v{vTa}, 2, v0")
    for w in range(NW):
        a(f"ds_read_b32 v{vX+w}, v{vTa} offset:{w*1024}")
    a("s_waitcnt lgkmcnt(0)")
    for w in range(1, NW):
        a(f"v_add_f32 v{vX}, v{vX}, v{vX+w}")
    a(f"v_lshrrev_b32 v{vTa}, 2, v0")
    a(f"v_and_b32 v{vTb}, 3, v0")
    a(f"v_lshrrev_b32 v{vTc}, 4, v{vTa}")
    a(f"v_lshl_add_u32 v{vTc}, v{vTc}, 2, v{vTb}")
    a(f"v_lshlrev_b32 v{vTc}, 3, v{vTc}")
    a(f"v_and_b32 v{vTb}, 7, v{vTa}")
    a(f"v_add_u32 v{vTc}, v{vTc}, v{vTb}")
    a(f"v_bfe_u32 v{vTb}, v{vTa}, 3, 1")
    a(f"v_mul_lo_u32 v{vTb}, v{vTb}, s{sT2}")
    a(f"v_add_u32 v{vTc}, v{vTc}, v{vTb}")
    a(f"s_lshl_b32 s{sT0}, s{sColB}, 7")
    a(f"v_add_u32 v{vTc}, s{sT0}, v{vTc}")
    a(f"v_lshlrev_b32 v{vTc}, 2, v{vTc}")
    a(f"buffer_store_dword v{vX}, v{vTc}, s[{sW}:{sW+3}], s{sDst} offen")
    a(f"s_branch {name}_done")
    a.lab(f"{name}_misc")
    a(f"v_lshlrev_b32 v{vTa}, 4, v0")
    a(f"v_add_u32 v{vTa}, {WS_ACC:#x}, v{vTa}")
    for r in range(4):
        a(f"v_mov_b32 v{vD+r}, 0")
    for i in range(10):
        a(f"buffer_store_dwordx4 v[{vD}:{vD+3}], v{vTa}, s[{sW}:{sW+3}], 0 offen")
        a(f"v_add_u32 v{vTa}, 4096, v{vTa}")
    a(f"s_cmp_lg_u32 s{sWv}, 0")
    a(f"s_cbranch_scc1 {name}_done")
    a(f"s_load_dwordx2 s[30:31], s[0:1], {KARG['gw']}")
    a("s_waitcnt lgkmcnt(0)")
    srd(a, sA, 30, 1152)
    a(f"v_mul_u32_u24 v{vTa}, 18, v{vLane}")
    for i in range(9):
        a(f"buffer_load_ushort v{vA0+i}, v{vTa}, s[{sA}:{sA+3}], 0 offen offset:{2*i}")
        a(f"buffer_load_ushort v{vA0+10+i}, v{vTa}, s[{sX}:{sX+3}], 0 offen offset:{2*i}")
        a(f"buffer_load_ushort v{vA0+20+i}, v{vTa}, s[{sX}:{sX+3}], 0 offen offset:{1152+2*i}")
    a("s_waitcnt vmcnt(0)")
    a(f"v_mov_b32 v{vD}, 0")
    a(f"v_mov_b32 v{vD+1}, 0")
    for i in range(9):
        a(f"v_lshlrev_b32 v{vA0+i}, 16, v{vA0+i}")
        a(f"v_lshlrev_b32 v{vA0+10+i}, 16, v{vA0+10+i}")
        a(f"v_lshlrev_b32 v{vA0+20+i}, 16, v{vA0+20+i}")
        a(f"v_fma_f32 v{vD}, v{vA0+i}, v{vA0+10+i}, v{vD}")
        a(f"v_fma_f32 v{vD+1}, v{vA0+i}, v{vA0+20+i}, v{vD+1}")
    for sh in (32, 16, 8, 4, 2, 1):
        a(f"v_xor_b32 v{vTa}, {sh}, v{vLane}")
        a(f"v_lshlrev_b32 v{vTa}, 2, v{vTa}")
        a(f"ds_bpermute_b32 v{vTb}, v{vTa}, v{vD}")
        a(f"ds_bpermute_b32 v{vTc}, v{vTa}, v{vD+1}")
        a("s_waitcnt lgkmcnt(0)")
        a(f"v_add_f32 v{vD}, v{vD}, v{vTb}")
        a(f"v_add_f32 v{vD+1}, v{vD+1}, v{vTc}")
    a(f"s_mov_b32 s{sT0}, {f2u(-math.log2(math.e)):#x}")
    for r in range(2):
        a(f"v_mul_f32 v{vD+r}, s{sT0}, v{vD+r}")
        a(f"v_exp_f32 v{vD+r}, v{vD+r}")
        a("s_nop 0")
        a(f"v_add_f32 v{vD+r}, 1.0, v{vD+r}")
        a(f"v_rcp_f32 v{vD+r}, v{vD+r}")
    a(f"v_mov_b32 v{vTa}, {WS_G:#x}")
    a(f"buffer_store_dwordx2 v[{vD}:{vD+1}], v{vTa}, s[{sW}:{sW+3}], 0 offen")
    a.lab(f"{name}_done")
    a("s_waitcnt vmcnt(0)")
    a.lab(f"{name}_end")
    a("s_endpgm")
    return a.text(), nv, 36, (NJ + 1, 64 * NW), NW * 1024

def gen_k1(name):
    a = A()
    NW = 8
    ROWS = 576 // NW
    NM = ROWS // 4
    sW, sX, sA, sB = 4, 8, 12, 16
    sWv, sT0, sT1, sOffA, sCb, sRole = 20, 21, 22, 23, 30, 31
    vLane, vTa, vTb, vAoff, vXoff = 1, 2, 3, 4, 5
    vMask = 6
    vD0, vD1 = 12, 16
    vBop = 20
    vX = 28
    vA0 = 46
    vA1 = vA0 + 4 * NM
    nv = vA1 + 4 * NM
    a(f"s_cmp_ge_u32 s2, 69")
    a(f"s_cbranch_scc1 {name}_end")
    a(f"s_load_dwordx2 s[24:25], s[0:1], {KARG['x']}")
    a(f"s_load_dwordx2 s[26:27], s[0:1], {KARG['ws']}")
    a(f"v_and_b32 v{vLane}, 63, v0")
    a(f"v_lshrrev_b32 v{vTa}, 6, v0")
    a("s_nop 0")
    a(f"v_readfirstlane_b32 s{sWv}, v{vTa}")
    a("s_waitcnt lgkmcnt(0)")
    srd(a, sW, 26, WS_SIZE)
    srd(a, sX, 24, 2304)
    a(f"s_cmp_eq_u32 s2, 68")
    a(f"s_cbranch_scc1 {name}_misc")
    a(f"s_cmp_lt_u32 s2, 32")
    a(f"s_cbranch_scc1 {name}_qp")
    a(f"s_load_dwordx4 s[24:27], s[0:1], {KARG['wg']}")
    a(f"s_sub_u32 s{sCb}, s2, 32")
    a(f"s_mov_b32 s{sRole}, 1")
    a("s_waitcnt lgkmcnt(0)")
    srd(a, sA, 24, 576 * 9216)
    srd(a, sB, 26, 576 * 9216)
    a(f"s_mov_b32 s{sT1}, 9216")
    a(f"s_branch {name}_gemv")
    a.lab(f"{name}_qp")
    a(f"s_load_dwordx2 s[24:25], s[0:1], {KARG['wq']}")
    a(f"s_mov_b32 s{sCb}, s2")
    a(f"s_mov_b32 s{sRole}, 0")
    a("s_waitcnt lgkmcnt(0)")
    srd(a, sA, 24, 576 * 8192)
    srd(a, sB, 24, 576 * 8192)
    a(f"s_mov_b32 s{sT1}, 8192")
    a.lab(f"{name}_gemv")
    a(f"v_and_b32 v{vTa}, 15, v{vLane}")
    a(f"v_lshrrev_b32 v{vTb}, 4, v{vLane}")
    a(f"v_mul_lo_u32 v{vAoff}, v{vTb}, s{sT1}")
    a(f"v_lshl_add_u32 v{vAoff}, v{vTa}, 4, v{vAoff}")
    a(f"v_lshrrev_b32 v{vXoff}, 3, v{vTa}")
    a(f"v_mul_u32_u24 v{vXoff}, 1152, v{vXoff}")
    a(f"v_lshl_add_u32 v{vXoff}, v{vTb}, 1, v{vXoff}")
    a(f"s_mul_i32 s{sT0}, s{sWv}, {ROWS*2}")
    a(f"v_add_u32 v{vXoff}, s{sT0}, v{vXoff}")
    for m in range(NM):
        a(f"buffer_load_ushort v{vX+m}, v{vXoff}, s[{sX}:{sX+3}], 0 offen offset:{8*m}")
    a(f"s_mul_i32 s{sOffA}, s{sWv}, {ROWS}")
    a(f"s_mul_i32 s{sOffA}, s{sOffA}, s{sT1}")
    a(f"s_lshl_b32 s{sT0}, s{sCb}, 8")
    a(f"s_add_u32 s{sOffA}, s{sOffA}, s{sT0}")
    a(f"s_lshl_b32 s{sT1}, s{sT1}, 2")
    for m in range(NM):
        a(f"buffer_load_dwordx4 v[{vA0+4*m}:{vA0+4*m+3}], v{vAoff}, s[{sA}:{sA+3}], s{sOffA} offen")
        a(f"buffer_load_dwordx4 v[{vA1+4*m}:{vA1+4*m+3}], v{vAoff}, s[{sB}:{sB+3}], s{sOffA} offen")
        if m != NM - 1:
            a(f"s_add_u32 s{sOffA}, s{sOffA}, s{sT1}")
    a(f"v_and_b32 v{vTa}, 7, v{vLane}")
    lane_masks(a, vTa, vMask)
    a("s_waitcnt vmcnt(0)")
    for m in range(NM):
        b0 = vBop + (m % 2) * 4
        a(f"v_lshl_or_b32 v{vTa}, v{vX+m}, 16, v{vX+m}")
        for j in range(4):
            a(f"v_and_b32 v{b0+j}, v{vTa}, v{vMask+j}")
        a("s_nop 1")
        c0 = "0" if m == 0 else f"v[{vD0}:{vD0+3}]"
        c1 = "0" if m == 0 else f"v[{vD1}:{vD1+3}]"
        a(f"v_mfma_f32_16x16x32_bf16 v[{vD0}:{vD0+3}], v[{vA0+4*m}:{vA0+4*m+3}], v[{b0}:{b0+3}], {c0}")
        a(f"v_mfma_f32_16x16x32_bf16 v[{vD1}:{vD1+3}], v[{vA1+4*m}:{vA1+4*m+3}], v[{b0}:{b0+3}], {c1}")
    a("s_nop 7")
    a(f"s_lshl_b32 s{sT0}, s{sWv}, 11")
    a(f"v_lshl_add_u32 v{vTa}, v{vLane}, 4, s{sT0}")
    a(f"ds_write_b128 v{vTa}, v[{vD0}:{vD0+3}]")
    a(f"ds_write_b128 v{vTa}, v[{vD1}:{vD1+3}] offset:1024")
    a("s_waitcnt lgkmcnt(0)")
    a("s_barrier")
    a(f"s_cmp_lg_u32 s{sWv}, 0")
    a(f"s_cbranch_scc1 {name}_end")
    a(f"v_lshlrev_b32 v{vTa}, 4, v{vLane}")
    for w in range(NW):
        a(f"ds_read_b128 v[{vA0+4*w}:{vA0+4*w+3}], v{vTa} offset:{w*2048}")
        a(f"ds_read_b128 v[{vA1+4*w}:{vA1+4*w+3}], v{vTa} offset:{w*2048+1024}")
    a("s_waitcnt lgkmcnt(0)")
    for r in range(4):
        a(f"v_mov_b32 v{vD0+r}, v{vA0+r}")
        a(f"v_mov_b32 v{vD1+r}, v{vA1+r}")
    for w in range(1, NW):
        for r in range(4):
            a(f"v_add_f32 v{vD0+r}, v{vD0+r}, v{vA0+4*w+r}")
            a(f"v_add_f32 v{vD1+r}, v{vD1+r}, v{vA1+4*w+r}")
    a(f"v_lshrrev_b32 v{vTa}, 4, v{vLane}")
    a(f"v_lshlrev_b32 v{vTa}, 5, v{vTa}")
    a(f"v_and_b32 v{vTb}, 7, v{vLane}")
    a(f"v_add_u32 v{vTa}, v{vTa}, v{vTb}")
    a(f"s_lshl_b32 s{sT0}, s{sCb}, 7")
    a(f"v_add_u32 v{vTa}, s{sT0}, v{vTa}")
    a(f"v_bfe_u32 v{vTb}, v{vLane}, 3, 1")
    a(f"s_cmp_eq_u32 s{sRole}, 1")
    a(f"s_cbranch_scc1 {name}_ffn_out")
    a(f"v_lshl_add_u32 v{vTa}, v{vTb}, 12, v{vTa}")
    a(f"v_lshlrev_b32 v{vTa}, 1, v{vTa}")
    for r in range(4):
        a(f"v_cvt_pk_bf16_f32 v{vX+r}, v{vD0+r}, v{vD0+r}")
    for r in range(4):
        a(f"buffer_store_short v{vX+r}, v{vTa}, s[{sW}:{sW+3}], 0 offen offset:{WS_Q + r*16}")
    a(f"s_branch {name}_done")
    a.lab(f"{name}_ffn_out")
    a(f"v_mul_u32_u24 v{vTb}, 4608, v{vTb}")
    a(f"v_add_u32 v{vTa}, v{vTa}, v{vTb}")
    a(f"v_lshlrev_b32 v{vTa}, 1, v{vTa}")
    K1c = -2.0 * math.sqrt(2.0 / math.pi) * math.log2(math.e)
    a(f"s_mov_b32 s{sT0}, {f2u(0.044715):#x}")
    a(f"s_mov_b32 s{sT1}, {f2u(K1c):#x}")
    for r in range(4):
        g, u, t = vD0 + r, vD1 + r, vX + 8 + r
        a(f"v_cvt_pk_bf16_f32 v{g}, v{g}, v{g}")
        a(f"v_and_b32 v{g}, 0xffff0000, v{g}")
        a(f"v_cvt_pk_bf16_f32 v{u}, v{u}, v{u}")
        a(f"v_and_b32 v{u}, 0xffff0000, v{u}")
        a(f"v_mul_f32 v{t}, v{g}, v{g}")
        a(f"v_mul_f32 v{t}, v{t}, v{g}")
        a(f"v_fma_f32 v{t}, v{t}, s{sT0}, v{g}")
        a(f"v_mul_f32 v{t}, s{sT1}, v{t}")
        a(f"v_exp_f32 v{t}, v{t}")
        a("s_nop 0")
        a(f"v_add_f32 v{t}, 1.0, v{t}")
        a(f"v_rcp_f32 v{t}, v{t}")
        a("s_nop 0")
        a(f"v_mul_f32 v{t}, v{t}, v{g}")
        a(f"v_cvt_pk_bf16_f32 v{t}, v{t}, v{t}")
        a(f"v_and_b32 v{t}, 0xffff0000, v{t}")
        a(f"v_mul_f32 v{t}, v{t}, v{u}")
        a(f"v_cvt_pk_bf16_f32 v{vX+r}, v{t}, v{t}")
    for r in range(4):
        a(f"v_add_u32 v{vX+4+r}, {WS_H + r*16:#x}, v{vTa}")
        a(f"buffer_store_short v{vX+r}, v{vX+4+r}, s[{sW}:{sW+3}], 0 offen")
    a(f"s_branch {name}_done")
    a.lab(f"{name}_misc")
    a(f"v_lshlrev_b32 v{vTa}, 4, v0")
    a(f"v_add_u32 v{vTa}, {WS_ACC:#x}, v{vTa}")
    for r in range(4):
        a(f"v_mov_b32 v{vD0+r}, 0")
    for i in range(5):
        a(f"buffer_store_dwordx4 v[{vD0}:{vD0+3}], v{vTa}, s[{sW}:{sW+3}], 0 offen")
        a(f"v_add_u32 v{vTa}, 8192, v{vTa}")
    a(f"s_cmp_lg_u32 s{sWv}, 0")
    a(f"s_cbranch_scc1 {name}_done")
    a(f"s_load_dwordx2 s[24:25], s[0:1], {KARG['gw']}")
    a("s_waitcnt lgkmcnt(0)")
    srd(a, sA, 24, 1152)
    a(f"v_mul_u32_u24 v{vTa}, 18, v{vLane}")
    for i in range(9):
        a(f"buffer_load_ushort v{vX+i}, v{vTa}, s[{sA}:{sA+3}], 0 offen offset:{2*i}")
        a(f"buffer_load_ushort v{vA0+i}, v{vTa}, s[{sX}:{sX+3}], 0 offen offset:{2*i}")
        a(f"buffer_load_ushort v{vA0+16+i}, v{vTa}, s[{sX}:{sX+3}], 0 offen offset:{1152+2*i}")
    a("s_waitcnt vmcnt(0)")
    a(f"v_mov_b32 v{vD0}, 0")
    a(f"v_mov_b32 v{vD0+1}, 0")
    for i in range(9):
        a(f"v_lshlrev_b32 v{vX+i}, 16, v{vX+i}")
        a(f"v_lshlrev_b32 v{vA0+i}, 16, v{vA0+i}")
        a(f"v_lshlrev_b32 v{vA0+16+i}, 16, v{vA0+16+i}")
        a(f"v_fma_f32 v{vD0}, v{vX+i}, v{vA0+i}, v{vD0}")
        a(f"v_fma_f32 v{vD0+1}, v{vX+i}, v{vA0+16+i}, v{vD0+1}")
    for sh in (32, 16, 8, 4, 2, 1):
        a(f"v_xor_b32 v{vTa}, {sh}, v{vLane}")
        a(f"v_lshlrev_b32 v{vTa}, 2, v{vTa}")
        a(f"ds_bpermute_b32 v{vTb}, v{vTa}, v{vD0}")
        a(f"ds_bpermute_b32 v{vX}, v{vTa}, v{vD0+1}")
        a("s_waitcnt lgkmcnt(0)")
        a(f"v_add_f32 v{vD0}, v{vD0}, v{vTb}")
        a(f"v_add_f32 v{vD0+1}, v{vD0+1}, v{vX}")
    a(f"s_mov_b32 s{sT0}, {f2u(-math.log2(math.e)):#x}")
    for r in range(2):
        a(f"v_mul_f32 v{vD0+r}, s{sT0}, v{vD0+r}")
        a(f"v_exp_f32 v{vD0+r}, v{vD0+r}")
        a("s_nop 0")
        a(f"v_add_f32 v{vD0+r}, 1.0, v{vD0+r}")
        a(f"v_rcp_f32 v{vD0+r}, v{vD0+r}")
    a(f"v_mov_b32 v{vTa}, {WS_G:#x}")
    a(f"buffer_store_dwordx2 v[{vD0}:{vD0+1}], v{vTa}, s[{sW}:{sW+3}], 0 offen")
    a.lab(f"{name}_done")
    a("s_waitcnt vmcnt(0)")
    a.lab(f"{name}_end")
    a("s_endpgm")
    return a.text(), nv, 32, (69, 64 * NW), NW * 2048

def gen_k3(name, fused=True):
    a = A()
    NWG = 256
    sW, sWo, sWd, sOut, sDbg = 4, 8, 12, 16, 20
    sWv, sT0, sT1, sT2, sC = 24, 25, 26, 27, 28
    vLane, vTa, vTb, vTc, vAoff = 1, 2, 3, 4, 5
    vMask = 6
    vDa, vDb = 12, 16
    vBop = 20
    vML = 28
    vOv = 44
    vH = 76
    vAo = 82
    vAd = 98
    vW = 118
    vG = 126
    vOff = 128
    vFP = 136
    nv = 168
    a(f"s_cmp_ge_u32 s2, {NWG}")
    a(f"s_cbranch_scc1 {name}_end")
    a(f"s_load_dwordx2 s[30:31], s[0:1], {KARG['ws']}")
    a(f"s_load_dwordx2 s[32:33], s[0:1], {KARG['wo']}")
    a(f"s_load_dwordx2 s[34:35], s[0:1], {KARG['wd']}")
    a(f"s_load_dwordx4 s[36:39], s[0:1], {KARG['out']}")
    a(f"v_and_b32 v{vLane}, 63, v0")
    a(f"v_lshrrev_b32 v{vTa}, 6, v0")
    a("s_nop 0")
    a(f"v_readfirstlane_b32 s{sWv}, v{vTa}")
    a("s_waitcnt lgkmcnt(0)")
    srd(a, sW, 30, WS_SIZE)
    srd(a, sWo, 32, 4096 * 1152)
    srd(a, sWd, 34, 4608 * 1152)
    srd(a, sOut, 36, 2304)
    srd(a, sDbg, 38, 256)
    a(f"s_mov_b32 s{sC}, {f2u(SCALE):#x}")
    a(f"v_and_b32 v{vTa}, 15, v{vLane}")
    a(f"v_lshrrev_b32 v{vTb}, 4, v{vLane}")
    a(f"v_mul_u32_u24 v{vAoff}, 1152, v{vTb}")
    a(f"v_lshl_add_u32 v{vAoff}, v{vTa}, 4, v{vAoff}")
    a(f"s_mul_i32 s{sT0}, s2, {16*1152}")
    a(f"s_lshl_b32 s{sT1}, s{sWv}, 8")
    a(f"s_add_u32 s{sT0}, s{sT0}, s{sT1}")
    for m in range(4):
        a(f"buffer_load_dwordx4 v[{vAo+4*m}:{vAo+4*m+3}], v{vAoff}, s[{sWo}:{sWo+3}], s{sT0} offen")
        a(f"s_add_u32 s{sT0}, s{sT0}, {4*1152}")
    a(f"s_mul_i32 s{sT0}, s2, {18*1152}")
    a(f"s_add_u32 s{sT0}, s{sT0}, s{sT1}")
    for m in range(5):
        a(f"buffer_load_dwordx4 v[{vAd+4*m}:{vAd+4*m+3}], v{vAoff}, s[{sWd}:{sWd+3}], s{sT0} offen")
        a(f"s_add_u32 s{sT0}, s{sT0}, {4*1152}")
    a(f"v_lshrrev_b32 v{vTc}, 3, v{vTa}")
    a(f"v_mul_u32_u24 v{vOff}, 4608, v{vTc}")
    a(f"v_add_u32 v{vOff}, v{vOff}, v{vTb}")
    a(f"s_mul_i32 s{sT0}, s2, 18")
    a(f"v_add_u32 v{vOff}, s{sT0}, v{vOff}")
    a(f"v_lshlrev_b32 v{vOff}, 1, v{vOff}")
    if fused:
        a(f"v_lshlrev_b32 v{vOff}, 1, v{vOff}")
        for mt in range(2):
            for th in range(3):
                a(f"s_mov_b32 s{sT2}, {WS_FP + (mt*3+th)*2*4608*4:#x}")
                for m in range(5):
                    a(f"buffer_load_dword v{vFP+(mt*3+th)*5+m}, v{vOff}, s[{sW}:{sW+3}], s{sT2} offen offset:{16*m}")
    else:
        a(f"s_mov_b32 s{sT2}, {WS_H:#x}")
        for m in range(5):
            a(f"buffer_load_ushort v{vH+m}, v{vOff}, s[{sW}:{sW+3}], s{sT2} offen offset:{8*m}")
    a(f"v_lshlrev_b32 v{vOff}, 2, v{vTc}")
    a(f"s_mov_b32 s{sT2}, {WS_G:#x}")
    a(f"buffer_load_dword v{vG}, v{vOff}, s[{sW}:{sW+3}], s{sT2} offen")
    a(f"s_lshr_b32 s{sT0}, s2, 3")
    a(f"s_and_b32 s{sT1}, s{sT0}, 1")
    a(f"s_lshr_b32 s{sT0}, s{sT0}, 1")
    a(f"s_and_b32 s{sT2}, s{sT0}, 1")
    a(f"s_lshl_b32 s{sT2}, s{sT2}, 3")
    a(f"s_lshr_b32 s{sT0}, s{sT0}, 1")
    a(f"s_add_u32 s{sT0}, s{sT0}, s{sT2}")
    a(f"v_lshlrev_b32 v{vOff}, 4, v{vTc}")
    a(f"v_add_u32 v{vOff}, s{sT0}, v{vOff}")
    a(f"v_lshlrev_b32 v{vOff+1}, 4, v{vOff}")
    a(f"s_lshl_b32 s{sT2}, s{sT1}, 3")
    a(f"s_add_u32 s{sT2}, s{sT2}, {WS_ML:#x}")
    for s in range(8):
        a(f"buffer_load_dwordx2 v[{vML+2*s}:{vML+2*s+1}], v{vOff+1}, s[{sW}:{sW+3}], s{sT2} offen offset:{512*s}")
    a(f"v_lshlrev_b32 v{vOff+1}, 10, v{vOff}")
    a(f"s_and_b32 s{sT2}, s2, 7")
    for m in range(4):
        a(f"v_add_u32 v{vTa}, {4*m}, v{vTb}")
        a(f"v_and_b32 v{vTc}, 7, v{vTa}")
        a(f"v_lshlrev_b32 v{vTc}, 4, v{vTc}")
        a(f"v_lshrrev_b32 v{vTa}, 3, v{vTa}")
        a(f"s_lshl_b32 s{sT0}, s{sT2}, 1")
        a(f"v_add_u32 v{vTa}, s{sT0}, v{vTa}")
        a(f"v_and_b32 v{vOff+2}, 3, v{vTa}")
        a(f"v_lshl_add_u32 v{vTc}, v{vOff+2}, 2, v{vTc}")
        a(f"v_lshrrev_b32 v{vTa}, 2, v{vTa}")
        a(f"v_lshl_add_u32 v{vTc}, v{vTa}, 8, v{vTc}")
        a(f"s_lshl_b32 s{sT0}, s{sT1}, 7")
        a(f"v_add_u32 v{vTc}, s{sT0}, v{vTc}")
        a(f"v_add_u32 v{vTc}, v{vTc}, v{vOff+1}")
        for s in range(8):
            a(f"s_mov_b32 s{sT0}, {WS_O + s*32768:#x}")
            a(f"buffer_load_dword v{vOv+8*m+s}, v{vTc}, s[{sW}:{sW+3}], s{sT0} offen")
    a(f"v_and_b32 v{vTa}, 7, v{vLane}")
    lane_masks(a, vTa, vMask)
    a("s_waitcnt vmcnt(0)")
    a(f"v_mov_b32 v{vTa}, v{vML}")
    for s in range(1, 8):
        a(f"v_max_f32 v{vTa}, v{vTa}, v{vML+2*s}")
    a(f"v_mov_b32 v{vTb}, 0")
    for s in range(8):
        a(f"v_sub_f32 v{vW+s}, v{vML+2*s}, v{vTa}")
        a(f"v_mul_f32 v{vW+s}, s{sC}, v{vW+s}")
        a(f"v_exp_f32 v{vW+s}, v{vW+s}")
        a("s_nop 0")
        a(f"v_fma_f32 v{vTb}, v{vW+s}, v{vML+2*s+1}, v{vTb}")
    a(f"v_rcp_f32 v{vTb}, v{vTb}")
    for m in range(4):
        a(f"v_mul_f32 v{vTc}, v{vW}, v{vOv+8*m}")
        for s in range(1, 8):
            a(f"v_fma_f32 v{vTc}, v{vW+s}, v{vOv+8*m+s}, v{vTc}")
        a(f"v_mul_f32 v{vTc}, v{vTc}, v{vTb}")
        a(f"v_cvt_pk_bf16_f32 v{vTc}, v{vTc}, v{vTc}")
        b0 = vBop + (m % 2) * 4
        for j in range(4):
            a(f"v_and_b32 v{b0+j}, v{vTc}, v{vMask+j}")
        a("s_nop 1")
        c = "0" if m == 0 else f"v[{vDa}:{vDa+3}]"
        a(f"v_mfma_f32_16x16x32_bf16 v[{vDa}:{vDa+3}], v[{vAo+4*m}:{vAo+4*m+3}], v[{b0}:{b0+3}], {c}")
    a(f"v_lshrrev_b32 v{vTb}, 4, v{vLane}")
    if fused:
        K1c = -2.0 * math.sqrt(2.0 / math.pi) * math.log2(math.e)
        a(f"s_mov_b32 s{sT0}, {f2u(0.044715):#x}")
        a(f"s_mov_b32 s{sT1}, {f2u(K1c):#x}")
        for m in range(5):
            g, u, t = vFP + m, vFP + 15 + m, vH + m
            a(f"v_add_f32 v{g}, v{g}, v{vFP+5+m}")
            a(f"v_add_f32 v{g}, v{g}, v{vFP+10+m}")
            a(f"v_add_f32 v{u}, v{u}, v{vFP+20+m}")
            a(f"v_add_f32 v{u}, v{u}, v{vFP+25+m}")
            a(f"v_cvt_pk_bf16_f32 v{g}, v{g}, v{g}")
            a(f"v_and_b32 v{g}, 0xffff0000, v{g}")
            a(f"v_cvt_pk_bf16_f32 v{u}, v{u}, v{u}")
            a(f"v_and_b32 v{u}, 0xffff0000, v{u}")
            a(f"v_mul_f32 v{t}, v{g}, v{g}")
            a(f"v_mul_f32 v{t}, v{t}, v{g}")
            a(f"v_fma_f32 v{t}, v{t}, s{sT0}, v{g}")
            a(f"v_mul_f32 v{t}, s{sT1}, v{t}")
            a(f"v_exp_f32 v{t}, v{t}")
            a("s_nop 0")
            a(f"v_add_f32 v{t}, 1.0, v{t}")
            a(f"v_rcp_f32 v{t}, v{t}")
            a("s_nop 0")
            a(f"v_mul_f32 v{t}, v{t}, v{g}")
            a(f"v_cvt_pk_bf16_f32 v{t}, v{t}, v{t}")
            a(f"v_and_b32 v{t}, 0xffff0000, v{t}")
            a(f"v_mul_f32 v{t}, v{t}, v{u}")
            a(f"v_cvt_pk_bf16_f32 v{t}, v{t}, v{t}")
            a(f"v_and_b32 v{t}, 0xffff, v{t}")
    for m in range(5):
        a(f"v_lshl_or_b32 v{vTc}, v{vH+m}, 16, v{vH+m}")
        if m == 4:
            a(f"v_cmp_gt_u32 vcc, 2, v{vTb}")
            a("s_nop 1")
            a(f"v_cndmask_b32 v{vTc}, 0, v{vTc}, vcc")
        b0 = vBop + (m % 2) * 4
        for j in range(4):
            a(f"v_and_b32 v{b0+j}, v{vTc}, v{vMask+j}")
        a("s_nop 1")
        c = "0" if m == 0 else f"v[{vDb}:{vDb+3}]"
        a(f"v_mfma_f32_16x16x32_bf16 v[{vDb}:{vDb+3}], v[{vAd+4*m}:{vAd+4*m+3}], v[{b0}:{b0+3}], {c}")
    a("s_nop 7")
    a(f"v_sub_f32 v{vTa}, 1.0, v{vG}")
    for r in range(4):
        a(f"v_mul_f32 v{vDa+r}, v{vDa+r}, v{vG}")
        a(f"v_fma_f32 v{vDa+r}, v{vDb+r}, v{vTa}, v{vDa+r}")
    a(f"s_and_b32 s{sT0}, s2, 7")
    a(f"s_mul_i32 s{sT0}, s{sT0}, 5120")
    a(f"s_lshl_b32 s{sT1}, s{sWv}, 10")
    a(f"s_add_u32 s{sT0}, s{sT0}, s{sT1}")
    a(f"s_add_u32 s{sT0}, s{sT0}, {WS_ACC:#x}")
    a(f"v_lshlrev_b32 v{vTa}, 2, v{vLane}")
    for r in range(4):
        a(f"buffer_atomic_add_f32 v{vDa+r}, v{vTa}, s[{sW}:{sW+3}], s{sT0} offen offset:{256*r}")
    a("s_waitcnt vmcnt(0)")
    a("s_barrier")
    a(f"v_mov_b32 v{vTb}, 1")
    a(f"v_mov_b32 v{vTc}, 0")
    a(f"s_cmp_lg_u32 s{sWv}, 0")
    a(f"s_cbranch_scc1 {name}_wait")
    a("s_mov_b64 exec, 1")
    a(f"buffer_atomic_add v{vTb}, v{vTc}, s[{sDbg}:{sDbg+3}], 0 offen sc0")
    a("s_waitcnt vmcnt(0)")
    a(f"ds_write_b32 v{vTc}, v{vTb}")
    a("s_waitcnt lgkmcnt(0)")
    a("s_mov_b64 exec, -1")
    a.lab(f"{name}_wait")
    a("s_barrier")
    a(f"v_mov_b32 v{vTc}, 0")
    a(f"ds_read_b32 v{vTb}, v{vTc}")
    a("s_waitcnt lgkmcnt(0)")
    a(f"v_readfirstlane_b32 s{sT0}, v{vTb}")
    a(f"s_cmp_lg_u32 s{sT0}, {NWG-1}")
    a(f"s_cbranch_scc1 {name}_end")
    a(f"s_lshl_b32 s{sT1}, s{sWv}, 10")
    a(f"s_add_u32 s{sT1}, s{sT1}, {WS_ACC:#x}")
    for rep in range(8):
        for r in range(4):
            a(f"buffer_load_dword v{vOv+rep*4+r}, v{vTa}, s[{sW}:{sW+3}], s{sT1} offen offset:{256*r} sc0 sc1")
        a(f"s_add_u32 s{sT1}, s{sT1}, 5120")
    a("s_waitcnt vmcnt(0)")
    for r in range(4):
        for rep in range(1, 8):
            a(f"v_add_f32 v{vOv+r}, v{vOv+r}, v{vOv+rep*4+r}")
    a(f"v_lshrrev_b32 v{vTa}, 4, v{vLane}")
    a(f"v_lshlrev_b32 v{vTa}, 5, v{vTa}")
    a(f"v_and_b32 v{vTb}, 7, v{vLane}")
    a(f"v_add_u32 v{vTa}, v{vTa}, v{vTb}")
    a(f"s_lshl_b32 s{sT0}, s{sWv}, 7")
    a(f"v_add_u32 v{vTa}, s{sT0}, v{vTa}")
    a(f"v_bfe_u32 v{vTb}, v{vLane}, 3, 1")
    a(f"v_mul_u32_u24 v{vTb}, 576, v{vTb}")
    for r in range(4):
        a(f"v_add_u32 v{vTc}, {8*r}, v{vTa}")
        a(f"v_cmp_gt_u32 vcc, 576, v{vTc}")
        a(f"v_add_u32 v{vTc}, v{vTc}, v{vTb}")
        a(f"v_lshlrev_b32 v{vTc}, 1, v{vTc}")
        a(f"v_mov_b32 v{vOff}, 0x7ffffff0")
        a(f"v_cndmask_b32 v{vTc}, v{vOff}, v{vTc}, vcc")
        a(f"v_cvt_pk_bf16_f32 v{vOff+1}, v{vOv+r}, v{vOv+r}")
        a(f"buffer_store_short v{vOff+1}, v{vTc}, s[{sOut}:{sOut+3}], 0 offen")
    a("s_waitcnt vmcnt(0)")
    a.lab(f"{name}_end")
    a("s_endpgm")
    return a.text(), nv, 40, (NWG, 320), 64

def kd(name, nv, ns):
    acc = (nv + 3) // 4 * 4
    return f""".amdhsa_kernel {name}
  .amdhsa_next_free_vgpr {nv}
  .amdhsa_next_free_sgpr {ns}
  .amdhsa_accum_offset {acc}
  .amdhsa_group_segment_fixed_size 0
  .amdhsa_kernarg_size 104
  .amdhsa_user_sgpr_count 2
  .amdhsa_user_sgpr_kernarg_segment_ptr 1
  .amdhsa_system_sgpr_workgroup_id_x 1
.end_amdhsa_kernel
"""

def main():
    out = sys.argv[1]
    ks = []
    n1, n2, n3 = f"{PFX}_a_kernel", f"{PFX}_b_kernel", f"{PFX}_c_kernel"
    ks.append((n1,) + gen_k1b(n1))
    ks.append((n2,) + gen_k2(n2))
    ks.append((n3,) + gen_k3(n3))
    s = "; generated by dev/gen.py\n"
    for (n, t, nv, ns, (g, b), lds) in ks:
        s += f"; @launch kernel={n} grid=({g},1,1) block=({b},1,1) lds={lds}\n"
    s += '.amdgcn_target "amdgcn-amd-amdhsa--gfx950"\n.text\n'
    for (n, t, nv, ns, gb, lds) in ks:
        s += f".globl {n}\n.p2align 8\n.type {n},@function\n{n}:\n{t}"
    s += '.section .rodata,"a"\n'
    for (n, t, nv, ns, gb, lds) in ks:
        s += ".p2align 6\n" + kd(n, nv, ns)
    open(out, "w").write(s)

main()
```
